```python
import torch

def _softmax(x, axis=-1):
    return torch.softmax(x, dim=axis)
def _gelu(x):
    return torch.nn.functional.gelu(x, approximate="tanh")
def _silu(x):
    return torch.nn.functional.silu(x)
def _sigmoid(x):
    return torch.sigmoid(x)
def _layernorm(x, axis=-1, eps=1e-5):
    m = x.mean(dim=axis, keepdim=True)
    v = x.var(dim=axis, keepdim=True, unbiased=False)
    return (x - m) / torch.sqrt(v + eps)
def _scatter_add(tgt, idx, src, axis=0):
    return tgt.clone().index_add_(axis, idx, src)
def _segment_sum(src, seg, n):
    out = torch.zeros((n,) + src.shape[1:], dtype=src.dtype)
    return out.index_add_(0, seg, src)
def _pad(x, pw):
    flat = tuple(v for pair in reversed(pw) for v in pair)
    return torch.nn.functional.pad(x, flat)

kernel_name = 'standalone__seq2seq_rnn_t_joint__speech'

def setup_inputs():

    _w = (lambda a: (lambda t: t.to(torch.bfloat16) if t.is_floating_point() else t)(torch.as_tensor(a)))
    B, T, D, K = 2, 4000, 144, 31
    U = 8
    sc = (1.0 / (K * D)) ** 0.5
    sd = (1.0 / D) ** 0.5
    return {
        "x": _w((lambda *s: torch.randn(*s, dtype=torch.bfloat16) * 0.2)(B, T, D) * 0.5),
        "w1": _w((lambda *s: torch.randn(*s, dtype=torch.bfloat16) * 3.2)(K, D, D) * sc),
        "w2": _w((lambda *s: torch.randn(*s, dtype=torch.bfloat16) * 3.2)(K, D, D) * sc),
        "g": _w((lambda *s: torch.randn(*s, dtype=torch.bfloat16) * 3.2)(B, U, D) * 0.5),
        "w_f": _w((lambda *s: torch.randn(*s, dtype=torch.bfloat16) * 3.2)(D, D) * sd),
        "w_g": _w((lambda *s: torch.randn(*s, dtype=torch.bfloat16) * 3.2)(D, D) * sd),
        "w_o": _w((lambda *s: torch.randn(*s, dtype=torch.bfloat16) * 3.2)(D, D) * sd),
    }

def reference(x, w1, w2, g, w_f, w_g, w_o):
    B, T, D = x.shape
    K = w1.shape[0]
    pad = K // 2
    xp = _pad(x, ((0,0),(pad,pad),(0,0)))
    h = torch.zeros_like(x)
    for i in range(K):
        h = h + torch.einsum("btc,cd->btd", xp[:, i:i+T, :], w1[i])
    h = _gelu(h)[:, ::2, :]
    T1 = h.shape[1]
    hp = _pad(h, ((0,0),(pad,pad),(0,0)))
    f = torch.zeros_like(h)
    for i in range(K):
        f = f + torch.einsum("btc,cd->btd", hp[:, i:i+T1, :], w2[i])
    f = _gelu(f)[:, ::2, :]
    fe = torch.einsum("btd,de->bte", f, w_f)
    ge = torch.einsum("bud,de->bue", g, w_g)
    j = torch.tanh(fe[:, :, None, :] + ge[:, None, :, :])
    return torch.einsum("btud,dv->btuv", j, w_o)
```

```python
import re

TRANS = ("v_exp_f32", "v_log_f32", "v_rcp_f32", "v_rsq_f32", "v_sqrt_f32", "v_sin_f32", "v_cos_f32")

def regs_of(tok):
    tok = tok.strip()
    tok = tok.lstrip('-').strip('|')
    m = re.fullmatch(r'([vsa])(\d+)', tok)
    if m:
        return {(m.group(1), int(m.group(2)))}
    m = re.fullmatch(r'([vsa])\[(\d+):(\d+)\]', tok)
    if m:
        return {(m.group(1), i) for i in range(int(m.group(2)), int(m.group(3)) + 1)}
    if tok in ('vcc', 'vcc_lo', 'vcc_hi'):
        return {('s', 'vcc')}
    if tok in ('exec', 'exec_lo', 'exec_hi'):
        return {('s', 'exec')}
    if tok == 'm0':
        return {('s', 'm0')}
    return set()

class Ins:
    def __init__(self, text):
        self.text = text
        t = text.split(';')[0].strip()
        self.label = t.endswith(':')
        self.directive = t.startswith('.')
        self.empty = (t == '')
        self.kind = None
        self.dst = set(); self.src = set()
        self.states = 0
        if self.label or self.directive or self.empty:
            return
        parts = t.split(None, 1)
        self.op = op = parts[0]
        rest = parts[1] if len(parts) > 1 else ''
        ops = [o.strip() for o in rest.split(',')] if rest else []
        mods = ''
        if ops:
            sp = ops[-1].split(None, 1)
            ops[-1] = sp[0]
            mods = sp[1] if len(sp) > 1 else ''
        clean = []
        for i, o in enumerate([o.strip() for o in rest.split(',')]):
            first = o.split(None, 1)[0] if o else ''
            clean.append(first)
            if len(o.split(None, 1)) > 1:
                break
        ops = clean
        self.ops = ops
        self.mods = rest
        self.states = 1
        R = [regs_of(o) for o in ops]
        if op == 's_nop':
            self.kind = 'nop'; self.states = int(ops[0], 0) + 1
        elif op.startswith('v_mfma'):
            self.kind = 'mfma'
            self.dst = R[0]; self.a = R[1]; self.b = R[2]; self.c = R[3]
            self.src = R[1] | R[2] | R[3]
        elif op.startswith('v_'):
            self.kind = 'valu'
            self.trans = any(op.startswith(x) for x in TRANS)
            if op.startswith('v_cmp'):
                self.dst = R[0]; self.src = set().union(*R[1:])
            elif op.startswith('v_permlane') and 'swap' in op:
                self.dst = R[0] | R[1]; self.src = R[0] | R[1]
            elif op.startswith(('v_add_co', 'v_sub_co', 'v_addc_co', 'v_subb_co', 'v_mad_u64')):
                self.dst = R[0] | R[1]; self.src = set().union(*R[2:])
            else:
                self.dst = R[0]; self.src = set().union(*R[1:]) if len(R) > 1 else set()
                if op.startswith(('v_fmac', 'v_dot2c', 'v_pk_fmac', 'v_writelane')):
                    self.src |= R[0]
        elif op.startswith(('buffer_', 'global_')):
            self.kind = 'vmem'
            self.lds = bool(re.search(r'\blds\b', rest)) or '_lds_' in op
            self.wide_store = False
            if op.startswith('buffer_load'):
                if self.lds:
                    self.src = set().union(*R) | {('s', 'm0')}
                else:
                    self.dst = R[0]; self.src = set().union(*R[1:])
            elif op.startswith('global_load'):
                if self.lds:
                    self.src = set().union(*R) | {('s', 'm0')}
                else:
                    self.dst = R[0]; self.src = set().union(*R[1:])
            else:
                self.src = set().union(*R) if R else set()
                if 'x4' in op or 'x3' in op:
                    self.wide_store = True
                    self.data = R[0] if op.startswith('buffer') else R[1]
                if 'atomic' in op and re.search(r'\bsc0\b', rest):
                    self.dst = R[0]
        elif op.startswith('ds_'):
            self.kind = 'ds'
            if op.startswith(('ds_read', 'ds_bpermute', 'ds_permute', 'ds_swizzle')) or '_rtn' in op:
                self.dst = R[0]; self.src = set().union(*R[1:])
            else:
                self.src = set().union(*R)
        elif op.startswith(('s_load', 's_memtime', 's_memrealtime', 's_buffer_load')):
            self.kind = 'smem'
            self.dst = R[0]; self.src = set().union(*R[1:]) if len(R) > 1 else set()
        elif op.startswith('s_'):
            self.kind = 'salu'
            if op.startswith(('s_cmp', 's_bitcmp', 's_waitcnt', 's_barrier', 's_branch', 's_cbranch', 's_endpgm', 's_setprio', 's_sleep', 's_setpc')):
                self.src = set().union(*R) if R else set()
            else:
                self.dst = R[0]; self.src = set().union(*R[1:]) if len(R) > 1 else set()
                if op.startswith('s_movrel'):
                    self.src |= {('s', 'm0')}
                if 'saveexec' in op:
                    self.dst |= {('s', 'exec')}
        else:
            raise ValueError("unknown instruction " + text)

def need(p, c):
    n = 0
    pv = {r for r in p.dst if r[0] == 'v'}
    ps = {r for r in p.dst if r[0] == 's'}
    if p.kind == 'valu':
        if c.kind == 'mfma' and pv & c.src: n = max(n, 2)
        if c.kind == 'valu':
            if p.trans and pv & c.src: n = max(n, 1)
            if ps & c.src: n = max(n, 2)
            if c.op.startswith('v_cndmask') and len(c.ops) == 3 and ('s', 'vcc') in ps: n = max(n, 2)
            if c.op.startswith(('v_readfirstlane', 'v_readlane')) and pv & c.src: n = max(n, 1)
            if c.op.startswith(('v_readlane', 'v_writelane')) and ps & c.src: n = max(n, 4)
            if (c.op.startswith('v_permlane') or 'dpp' in c.op or 'row_' in c.mods or 'quad_perm' in c.mods) and pv & c.src: n = max(n, 2)
            if ('op_sel' in p.mods or 'sdwa' in p.op) and not p.op.startswith('v_pk') and pv & (c.src | c.dst): n = max(n, 1)
        if p.op.startswith('v_dot') and c.kind in ('valu', 'vmem', 'ds', 'mfma') and pv & (c.src | c.dst):
            if not (c.kind == 'valu' and c.op == p.op): n = max(n, 3)
        if p.trans and c.kind in ('vmem', 'ds') and pv & c.src: n = max(n, 1)
        if c.kind == 'vmem' and ps & c.src: n = max(n, 5)
    if p.kind == 'mfma':
        if c.kind == 'mfma':
            if p.dst & (c.a | c.b): n = max(n, 8)
            if p.dst & c.c and p.dst != c.c: n = max(n, 6)
            if p.dst & c.dst and not (p.dst & c.c): n = max(n, 8)
        elif c.kind in ('valu', 'vmem', 'ds'):
            if p.dst & (c.src | c.dst): n = max(n, 8)
            if c.kind == 'valu' and p.c & c.dst: n = max(n, 3)
    if p.kind == 'salu' and ('s', 'm0') in p.dst:
        if (c.kind == 'vmem' and c.lds) or (c.kind == 'salu' and c.op.startswith('s_movrel')): n = max(n, 1)
    if p.kind == 'vmem' and getattr(p, 'wide_store', False):
        if p.data & c.dst: n = max(n, 2)
    return n

def fix_hazards(lines):
    out = []
    for text in lines:
        c = Ins(text)
        if c.kind is not None and c.kind != 'nop':
            dist = 0; pad = 0
            for p in reversed(out):
                if dist >= 8: break
                if p.kind is None: continue
                if p.kind != 'nop':
                    pad = max(pad, need(p, c) - dist)
                    if p.op in ('s_branch', 's_endpgm', 's_setpc_b64'): break
                dist += p.states
            if pad > 0:
                out.append(Ins(f"    s_nop {pad-1}"))
        out.append(c)
    return out

def check_edges(ins):
    labels = {i.text.strip()[:-1]: k for k, i in enumerate(ins) if i.label}
    bad = []
    for k, b in enumerate(ins):
        if b.kind == 'salu' and b.op.startswith(('s_branch', 's_cbranch')):
            tgt = labels[b.ops[0]]
            tail = []
            d = 0
            for p in reversed(ins[:k + 1]):
                if p.kind is None: continue
                tail.append((p, d)); d += p.states
                if d >= 9: break
            d2 = 0
            for c in ins[tgt:]:
                if c.kind is None: continue
                if c.kind != 'nop':
                    for p, dp in tail:
                        if p.kind != 'nop' and p is not b and need(p, c) > dp + d2 - 0:
                            bad.append((p.text, c.text))
                d2 += c.states
                if d2 >= 9 or (c.kind == 'salu' and c.op in ('s_branch', 's_endpgm')): break
    return bad

class Asm:
    def __init__(self):
        self.lines = []
    def __call__(self, s):
        for l in s.split('\n'):
            l = l.strip()
            if not l: continue
            if l.endswith(':') or l.startswith('.'):
                self.lines.append(l)
            else:
                self.lines.append('    ' + l)
    def finish(self):
        ins = fix_hazards(self.lines)
        bad = check_edges(ins)
        if bad:
            raise RuntimeError("branch-edge hazards: %r" % bad)
        return '\n'.join(i.text for i in ins) + '\n'

def vr(n, w=1):
    return f"v{n}" if w == 1 else f"v[{n}:{n+w-1}]"
def sr(n, w=1):
    return f"s{n}" if w == 1 else f"s[{n}:{n+w-1}]"
```

```python
import sys, struct
from asmlib import Asm, vr, sr

NAME = "standalone__seq2seq_rnn_t_joint__speech"
def f2u(x): return struct.unpack('<I', struct.pack('<f', x))[0]
def hx(x): return hex(x & 0xffffffff)

R = 112; G = 18; MB = 14; NWG = G * MB
XBYTES = 2304000; WBYTES = 1285632; GBYTES = 4608; MBYTES = 41472; OBYTES = 4608000
UNIT = 2304
GE_OFF = NWG * 9 * UNIT
FLAG_OFF = GE_OFF + G * 9216
STAMP_OFF = FLAG_OFF + NWG * 128
WS_USED = STAMP_OFF + NWG * 8 * 256
OOB = 0x80000000
XS = 17952; WSL = 16384
HB = 163840 - 8192
XL4 = HB - XS; W2s = XL4 - WSL; X3 = W2s - XS; W1s = X3 - WSL; X2 = W1s - XS
W0s = X2 - WSL; X1 = W0s - XS; X0 = X1 - XS
assert X0 >= 0 and X0 % 32 == 0
XSL = [X0, X1, X2, X3]; WSLOT = [W0s, W1s, W2s]
assert X2 >= 4 * 9216 and X3 >= 8 * 9216 and HB >= 16 * 9216
LWF = 0; LWO = 41472; LWG = 82944; FB = 126976; FE = 131072
EVEN = [X0, X0 + 64, X2, X2 + 64, X0, X0 + 64, X2, X2 + 64, XL4]
ODD = [XL4 + 64, X1, X1 + 64, X3, X3 + 64, X1, X1 + 64, X3, X3 + 64]
ITEM = [0, 5, 1, 6, 2, 7, 3, 8]
ROLE = [0, 1, 9, 2, 3, 10, 4, 5, 11, 6, 7, 12, 8, 13]
C1 = -2.3022082; C2 = -0.10294324; K2 = 2.8853900817779268

SX, SW1, SW2, SG, SWF, SWG, SWO, SOUT, SDBG, SWS = 4, 8, 12, 16, 20, 24, 28, 32, 36, 40
sGRP, sROLE, sWAVE, sLW = 44, 45, 46, 47
sT0, sT1, sT2, sT3 = 48, 49, 50, 51
sA, sB, sC, sD = 52, 53, 54, 55
sEX = 56
sC1, sC2 = 58, 60
sR = 62
sK2 = 63
sTAB = 64
sST = 100

class Gen:
    def __init__(self, dev=False):
        self.a = Asm(); self.dev = dev; self.nst = 0

    def stamp(self, idx, clk=None):
        if not self.dev: return
        a = self.a
        for op, ix in (("s_memrealtime", idx), ("s_memtime", clk)):
            if ix is None: continue
            a(f"{op} s[{sST}:{sST+1}]")
            a("s_waitcnt lgkmcnt(0)")
            if self.isC:
                if isinstance(ix, str):
                    a(f"s_mov_b32 m0, {ix}"); ix = "m0"
                a(f"v_writelane_b32 v255, s{sST}, {ix}")
            else: a(f"s_mov_b32 s{64+ix}, s{sST}")

    def srd(self, s, off, nbytes):
        a = self.a
        a(f"s_load_dwordx2 s[{s}:{s+1}], s[0:1], {off}")
        a(f"s_mov_b32 s{s+2}, {nbytes}")
        a(f"s_mov_b32 s{s+3}, 0x20000")

    def prologue(self):
        a = self.a
        a(f"s_cmp_ge_u32 s2, {NWG}")
        a("s_cbranch_scc1 L_end")
        for s, off, n in ((SX, 0, XBYTES), (SW1, 8, WBYTES), (SW2, 16, WBYTES), (SG, 24, GBYTES), (SWF, 32, MBYTES),
                          (SWG, 40, MBYTES), (SWO, 48, MBYTES), (SOUT, 56, OBYTES), (SDBG, 64, 256), (SWS, 72, WS_USED)):
            self.srd(s, off, n)
        a(f"""
        v_lshrrev_b32 v1, 6, v0
        v_and_b32 v0, 63, v0
        s_and_b32 s{sT0}, s2, 7
        v_readfirstlane_b32 s{sWAVE}, v1
        s_lshr_b32 s{sT1}, s2, 3
        s_sub_i32 s{sT2}, s{sT0}, 4
        s_max_i32 s{sT2}, s{sT2}, 0
        s_lshl_b32 s{sT0}, s{sT0}, 5
        s_sub_u32 s{sT0}, s{sT0}, s{sT2}
        s_add_u32 s{sT0}, s{sT0}, s{sT1}
        s_mul_i32 s{sGRP}, s{sT0}, 4682
        s_lshr_b32 s{sGRP}, s{sGRP}, 16
        s_mul_i32 s{sT1}, s{sGRP}, {MB}
        s_sub_u32 s{sT0}, s{sT0}, s{sT1}
        s_lshl_b32 s{sT0}, s{sT0}, 2
        """)
        for L in range(NWG): assert (L * 4682) >> 16 == L // MB
        tab = sum(r << (4 * i) for i, r in enumerate(ROLE))
        a(f"""
        s_mov_b32 s{sT2}, {hx(tab)}
        s_mov_b32 s{sT3}, {hx(tab >> 32)}
        s_lshr_b64 s[{sT2}:{sT3}], s[{sT2}:{sT3}], s{sT0}
        s_and_b32 s{sROLE}, s{sT2}, 15
        s_and_b32 s{sLW}, s{sWAVE}, 3
        s_cmp_lt_u32 s{sWAVE}, 4
        s_cbranch_scc1 L_cw
        """)

    def dma(self, v, srd, soff, off=0):
        o = f" offset:{off}" if off else ""
        self.a(f"buffer_load_dwordx4 v{v}, s[{srd}:{srd+3}], {soff} offen{o} lds")

    def load_mat(self, srd, lds, vM):
        a = self.a
        for i in range(11):
            if i % 4 == 0:
                a(f"s_add_u32 m0, s{sA}, {lds + 1024 * i}")
                a(f"s_mov_b32 s{sT0}, {1024 * i}")
            if i == 10: a("s_mov_b64 exec, 0xff")
            self.dma(vM, srd, f"s{sT0}", 1024 * (i % 4))
        a("s_mov_b64 exec, -1")

    def loader(self):
        a = self.a; self.isC = False
        vW, vW0, vT, vU, vN = 2, 3, 4, 5, 6
        fA = [8 + q for q in range(5)]; fB = [13 + q for q in range(5)]
        vA1, vA0, vM1, vM0, vMat = 18, 19, 20, 21, 22
        a(f"""
        v_lshlrev_b32 v{vMat}, 4, v0
        s_mul_i32 s{sA}, s{sLW}, 10368
        v_add_u32 v{vMat}, s{sA}, v{vMat}
        s_cmp_gt_u32 s{sROLE}, 8
        s_cbranch_scc1 L_lhelp
        """)
        a(f"""
        v_and_b32 v{vT}, 24, v0
        v_lshrrev_b32 v{vU}, 5, v0
        v_lshl_add_u32 v{vT}, v{vU}, 2, v{vT}
        v_bfe_u32 v{vU}, v0, 1, 2
        v_add_u32 v{vT}, v{vT}, v{vU}
        v_mul_u32_u24 v{vW}, 288, v{vT}
        v_and_b32 v{vU}, 1, v0
        v_lshl_add_u32 v{vW}, v{vU}, 4, v{vW}
        s_mul_i32 s{sT0}, s{sLW}, 82944
        s_lshl_b32 s{sT1}, s{sROLE}, 5
        s_add_u32 s{sT0}, s{sT0}, s{sT1}
        v_add_u32 v{vW}, s{sT0}, v{vW}
        v_subrev_u32 v{vW0}, 4608, v{vW}
        v_bfrev_b32 v1, 1
        v_cmp_gt_i32 vcc, 0, v{vW0}
        v_cndmask_b32 v{vW0}, v{vW0}, v1, vcc
        """)
        a(f"""
        s_mul_i32 s{sT0}, s{sGRP}, {R}
        s_sub_u32 s{sT0}, s{sT0}, 12
        v_lshrrev_b32 v{vU}, 3, v0
        v_add_u32 v{vU}, s{sT0}, v{vU}
        v_and_b32 v{vT}, 7, v0
        v_lshlrev_b32 v{vT}, 4, v{vT}
        s_lshl_b32 s{sT1}, s{sLW}, 3
        s_movk_i32 s{sB}, 1152
        s_movk_i32 s{sC}, 999
        """)
        def faddr(dst, q, plus):
            if q < 4:
                a(f"s_add_u32 s{sT2}, s{sT1}, {32 * q + plus}")
                a(f"v_add_u32 v{vN}, s{sT2}, v{vU}")
            else:
                a(f"v_add_u32 v{vN}, {128 + plus}, v{vU}")
            a(f"""
            v_cmp_lt_i32 vcc, s{sC}, v{vN}
            v_add_u32 v7, -8, v{vN}
            v_cndmask_b32 v7, v{vN}, v7, vcc
            v_cmp_lt_u32 s[{sEX}:{sEX+1}], s{sC}, v7
            v_mad_u32_u24 v{dst}, v7, s{sB}, v{vT}
            s_xor_b64 vcc, vcc, s[{sEX}:{sEX+1}]
            v_cndmask_b32 v{dst}, v{dst}, v1, vcc
            """)
        for q in range(5): faddr(fA[q], q, 0)
        a(f"""
        s_lshl_b32 s{sD}, s{sLW}, 4
        s_mul_i32 s{sT3}, s{sLW}, 1056
        s_lshl_b32 s{sR}, s{sLW}, 10
        s_waitcnt lgkmcnt(0)
        """)
        sX17 = sC1
        a(f"s_mov_b64 s[{sX17}:{sX17+1}], 0xffff")
        a(f"s_lshl_b64 s[{sX17}:{sX17+1}], s[{sX17}:{sX17+1}], s{sD}")
        sLX, sLWk = sC2, sR
        a(f"s_mov_b32 s{sLX}, s{sT3}")
        def xitem(l, slot):
            regs = fA if l <= 6 else fB
            a(f"s_movk_i32 s{sT0}, {256 + 128 * l if l <= 6 else 128 * (l - 7)}")
            for q in range(4):
                a(f"s_add_u32 m0, s{sLX}, {slot + 1056 * 4 * q}")
                self.dma(regs[q], SX, f"s{sT0}")
            a(f"s_mov_b32 m0, {slot + 1056 * 16}")
            a(f"s_mov_b64 exec, s[{sX17}:{sX17+1}]")
            self.dma(regs[4], SX, f"s{sT0}")
            a("s_mov_b64 exec, -1")
        def wstep(r):
            for q in range(4):
                a(f"s_add_u32 m0, s{sLWk}, {WSLOT[r % 3] + 4096 * q}")
                if q == 0 and r == 0:
                    self.dma(vW0, SW1, "0")
                else:
                    a(f"s_mov_b32 s{sT0}, {331776 * q + 9216 * r - 4608}")
                    self.dma(vW, SW1, f"s{sT0}")
        def step(r):
            if r < 8: xitem(ITEM[r], XSL[r % 4])
            if r == 0: xitem(4, XL4)
            wstep(r)
        self.stamp(0)
        step(0); step(1); self.stamp(25)
        a(f"s_lshl_b32 s{sT1}, s{sLW}, 3")
        for q in range(5): faddr(fB[q], q, 1)
        a(f"""
        s_mul_i32 s{sT0}, s{sROLE}, 4608
        s_mul_i32 s{sT1}, s{sLW}, 82944
        s_add_u32 s{sT0}, s{sT0}, s{sT1}
        v_lshlrev_b32 v{vA1}, 4, v0
        v_add_u32 v{vA1}, s{sT0}, v{vA1}
        v_lshrrev_b32 v{vT}, 5, v0
        v_mul_u32_u24 v{vT}, {41472 - 4608}, v{vT}
        v_add_u32 v{vM1}, 4096, v{vA1}
        v_add_u32 v{vM1}, v{vT}, v{vM1}
        v_subrev_u32 v{vA0}, 41472, v{vA1}
        v_subrev_u32 v{vM0}, 41472, v{vM1}
        s_cmp_eq_u32 s{sLW}, 0
        s_cselect_b64 vcc, -1, 0
        v_cndmask_b32 v{vA0}, v{vA0}, v1, vcc
        s_mov_b32 vcc_hi, 0
        v_cndmask_b32 v{vM0}, v{vM0}, v1, vcc
        s_mul_i32 s{sB}, s{sLW}, 9216
        """)
        def w2grp(g):
            if g: a(f"s_mov_b32 s{sT0}, {g * 331776 - 41472}")
            so = f"s{sT0}" if g else "0"
            a(f"s_add_u32 m0, s{sB}, {36864 * g}")
            for i in range(4): self.dma(vA1 if g else vA0, SW2, so, 1024 * i)
            a(f"s_add_u32 m0, s{sB}, {36864 * g + 4096}")
            self.dma(vM1 if g else vM0, SW2, so)
            a(f"s_add_u32 m0, s{sB}, {36864 * g + 5120}")
            a(f"s_mov_b32 s{sT0}, {g * 331776 + 512}")
            for i in range(4): self.dma(vA1, SW2, f"s{sT0}", 1024 * i)
        a("s_waitcnt vmcnt(9)"); self.stamp(1); a("s_barrier")
        step(2)
        for r in range(1, 7):
            a("s_waitcnt vmcnt(9)"); self.stamp(10 + r); a("s_barrier")
            step(r + 2); self.stamp(25 + r)
        a("s_waitcnt vmcnt(4)"); self.stamp(17); a("s_barrier")
        w2grp(0)
        a("s_waitcnt vmcnt(9)"); self.stamp(18); a("s_barrier")
        w2grp(1)
        a("s_waitcnt vmcnt(9)"); self.stamp(19); a("s_barrier")
        w2grp(2); w2grp(3)
        a("s_waitcnt vmcnt(18)"); self.stamp(20); a("s_barrier")
        a("s_waitcnt vmcnt(9)"); self.stamp(21); a("s_barrier")
        self.load_mat(SWF, LWF, vMat)
        a("s_waitcnt vmcnt(11)"); self.stamp(22); a("s_barrier")
        self.load_mat(SWO, LWO, vMat)
        a("s_branch L_lcommon")
        a("L_lhelp:")
        self.prefetch()
        a(f"s_cmp_lg_u32 s{sROLE}, 9")
        a("s_cbranch_scc1 L_lhelp2")
        self.load_mat(SWG, LWG, vMat)
        a("L_lhelp2:")
        a("s_waitcnt vmcnt(0)\ns_barrier")
        self.load_mat(SWF, LWF, vMat)
        self.load_mat(SWO, LWO, vMat)
        a("L_lcommon:")
        a(f"""
        s_cmp_lg_u32 s{sLW}, 0
        s_cbranch_scc1 L_nochk
        s_lshl_b32 s{sT0}, s{sGRP}, 2
        s_mov_b32 s{sT1}, 0
        L_chk:
        buffer_load_dword v1, off, s[{SDBG}:{SDBG+3}], s{sT0} sc1
        s_add_u32 s{sT1}, s{sT1}, 1
        s_waitcnt vmcnt(0)
        v_readfirstlane_b32 s{sT2}, v1
        s_cmp_lg_u32 s{sT2}, 0
        s_cbranch_scc1 L_nochk
        s_cmp_lt_u32 s{sT1}, 0x40000
        s_cbranch_scc1 L_chk
        L_nochk:
        """)
        a("s_waitcnt vmcnt(0)"); self.stamp(2); a("s_barrier")
        self.loader_p2()

    def prefetch(self):
        a = self.a
        sX, sCU = sB, sC
        a(f"""
        s_and_b32 s{sX}, s2, 7
        s_mul_i32 s{sCU}, s{sGRP}, 5
        s_add_u32 s{sCU}, s{sCU}, s{sROLE}
        s_mul_i32 s{sT0}, s{sX}, 11
        s_cmp_gt_u32 s{sX}, 2
        s_addc_u32 s{sT0}, s{sT0}, 9
        s_sub_u32 s{sCU}, s{sCU}, s{sT0}
        v_bfrev_b32 v1, 1
        s_cmp_gt_u32 s{sCU}, 10
        s_cselect_b32 s{sT0}, 3, s{sLW}
        s_cmp_eq_u32 s{sT0}, 3
        s_waitcnt lgkmcnt(0)
        s_cbranch_scc1 L_pfd
        """)
        self.stamp(0)
        a(f"""
        s_cmp_eq_u32 s{sLW}, 2
        s_cbranch_scc1 L_pfx
        s_mul_i32 s{sT0}, s{sCU}, 105
        s_lshl_b32 s{sT1}, s{sLW}, 6
        v_add_u32 v3, s{sT1}, v0
        v_add_u32 v2, s{sT0}, v3
        v_mul_u32_u24 v4, 911, v2
        v_lshrrev_b32 v4, 16, v4
        v_mul_u32_u24 v4, {82944 - 72 * 128}, v4
        v_lshl_add_u32 v2, v2, 7, v4
        v_cmp_gt_u32 vcc, 105, v3
        v_cndmask_b32 v2, v1, v2, vcc
        v_subrev_u32 v3, 4608, v2
        buffer_load_dword v5, v3, s[{SW1}:{SW1+3}], 0 offen
        """)
        for r in range(1, 9):
            a(f"s_mov_b32 s{sT0}, {9216 * r - 4608}")
            a(f"buffer_load_dword v5, v2, s[{SW1}:{SW1+3}], s{sT0} offen")
        a(f"""
        s_branch L_pfw2
        L_pfx:
        s_mul_i32 s{sT0}, s{sX}, 9
        s_lshr_b32 s{sT0}, s{sT0}, 2
        s_mul_i32 s{sT0}, s{sT0}, {R}
        s_cmp_gt_u32 s{sX}, 3
        s_cselect_b32 s{sT1}, 20, 12
        s_sub_u32 s{sT0}, s{sT0}, s{sT1}
        s_cmp_eq_u32 s{sX}, 3
        s_cselect_b32 s{sT1}, 43, 33
        s_mul_i32 s{sT2}, s{sT1}, s{sCU}
        s_add_u32 s{sT0}, s{sT0}, s{sT2}
        s_mul_i32 s{sT0}, s{sT0}, 1152
        v_mul_u32_u24 v2, 1152, v0
        v_add_u32 v2, s{sT0}, v2
        v_cmp_gt_u32 vcc, s{sT1}, v0
        v_cndmask_b32 v2, v1, v2, vcc
        """)
        for l in (0, 4, 5, 1, 6, 2, 7, 3, 8):
            a(f"buffer_load_dword v5, v2, s[{SX}:{SX+3}], 0 offen offset:{256 + 128 * l}")
        a(f"""
        L_pfw2:
        s_mul_i32 s{sT0}, s{sLW}, 11
        s_add_u32 s{sT0}, s{sT0}, s{sCU}
        s_lshl_b32 s{sT0}, s{sT0}, 13
        v_lshlrev_b32 v2, 7, v0
        """)
        self.stamp(5)
        if self.dev: a("s_waitcnt vmcnt(8)"); self.stamp(6); a("s_waitcnt vmcnt(0)"); self.stamp(7)
        for i in range(5):
            if i: a(f"s_add_u32 s{sT0}, s{sT0}, {33 * 8192}")
            a(f"buffer_load_dword v5, v2, s[{SW2}:{SW2+3}], s{sT0} offen")
        self.stamp(8)
        if self.dev: a("s_waitcnt vmcnt(0)"); self.stamp(9)
        a("L_pfd:")

    def gelu4(self, x, t, one):
        a = self.a
        o = vr(one, 2) if one is not None else "1.0"
        for h in (0, 2): a(f"v_pk_mul_f32 {vr(t+h,2)}, {vr(x+h,2)}, {vr(x+h,2)}")
        for h in (0, 2): a(f"v_pk_fma_f32 {vr(t+h,2)}, {vr(t+h,2)}, s[{sC2}:{sC2+1}], {vr(self.vC1,2)}")
        for h in (0, 2): a(f"v_pk_mul_f32 {vr(t+h,2)}, {vr(t+h,2)}, {vr(x+h,2)}")
        for h in range(4): a(f"v_exp_f32 v{t+h}, v{t+h}")
        for h in (0, 2):
            if one is None: a(f"v_pk_add_f32 {vr(t+h,2)}, {vr(t+h,2)}, 1.0 op_sel_hi:[1,0]")
            else: a(f"v_pk_add_f32 {vr(t+h,2)}, {vr(t+h,2)}, {o}")
        for h in range(4): a(f"v_rcp_f32 v{t+h}, v{t+h}")
        for h in (0, 2): a(f"v_pk_mul_f32 {vr(x+h,2)}, {vr(x+h,2)}, {vr(t+h,2)}")

    def gather(self, vo, P, T):
        a = self.a
        a(f"s_mul_i32 s{sT0}, s{sGRP}, {MB}")
        a(f"s_add_u32 s{sT0}, s{sT0}, s{sROLE}")
        a(f"s_mul_i32 s{sT0}, s{sT0}, {9 * UNIT}")
        for n in range(9):
            if n and n % 2 == 0: a(f"s_add_u32 s{sT0}, s{sT0}, {2 * UNIT}")
            o = f" offset:{UNIT}" if n % 2 else ""
            a(f"buffer_load_dwordx2 {vr(P+2*n,2)}, v{vo}, s[{SWS}:{SWS+3}], s{sT0} offen{o} sc1")
        a(f"s_mov_b32 s{sC2}, {hx(f2u(C2))}\ns_mov_b32 s{sC2+1}, {hx(f2u(C2))}")
        a(f"v_mov_b32 v{self.vC1}, {hx(f2u(C1))}\nv_mov_b32 v{self.vC1+1}, {hx(f2u(C1))}")
        a(f"s_mov_b32 s{sT1}, 0xffff0000")
        for n in range(9):
            a(f"s_waitcnt vmcnt({8-n})")
            d = T if n == 0 else T + 4
            for h in (0, 1):
                a(f"v_lshlrev_b32 v{d+2*h}, 16, v{P+2*n+h}")
                a(f"v_and_b32 v{d+2*h+1}, s{sT1}, v{P+2*n+h}")
            if n:
                for h in (0, 2): a(f"v_pk_add_f32 {vr(T+h,2)}, {vr(T+h,2)}, {vr(T+4+h,2)}")
        self.gelu4(T, T + 4, None)
        a(f"v_cvt_pk_bf16_f32 v{T}, v{T}, v{T+1}")
        a(f"v_cvt_pk_bf16_f32 v{T+1}, v{T+2}, v{T+3}")
        a(f"v_add_u32 v{vo}, {FB}, v{vo}")
        a(f"ds_write_b64 v{vo}, {vr(T,2)}")

    def loader_p2(self):
        a = self.a
        WO = 94
        GEr = 58
        ACC = 20
        Fb = 4
        vAd, vO = 2, 3
        self.vC1 = 56
        a(f"""
        v_lshrrev_b32 v{vAd}, 2, v0
        v_mul_u32_u24 v{vAd}, 288, v{vAd}
        v_and_b32 v1, 3, v0
        v_lshl_add_u32 v{vO}, v1, 3, v{vAd}
        v_lshl_add_u32 v{vAd}, v1, 4, v{vAd}
        v_add_u32 v{vO}, {LWO}, v{vO}
        v_add_u32 v{vAd}, {LWO}, v{vAd}
        """)
        n = 0
        for c in range(5):
            for t in range(9):
                for h in range(2 if c < 4 else 1):
                    ro = (32 * c + 16 * h) * 288
                    d = WO + 36 * c + 4 * t + 2 * h if c < 4 else WO + 144 + 2 * t
                    if t < 8: a(f"ds_read_b64_tr_b16 {vr(d,2)}, v{vAd} offset:{ro + 64 * (t >> 1) + 8 * (t & 1)}")
                    else: a(f"ds_read_b64_tr_b16 {vr(d,2)}, v{vO} offset:{ro + 256}")
        a(f"""
        v_lshrrev_b32 v1, 4, v0
        v_lshlrev_b32 v{vAd}, 8, v1
        v_bfe_u32 v{Fb}, v0, 3, 1
        s_lshl_b32 s{sT0}, s{sLW}, 1
        v_add_u32 v{Fb}, s{sT0}, v{Fb}
        v_lshl_add_u32 v{vAd}, v{Fb}, 4, v{vAd}
        s_cmp_gt_u32 s{sGRP}, 8
        s_cselect_b32 s{sT1}, 128, 0
        s_cselect_b32 s{sT2}, 8, 0
        s_cselect_b32 s{sT3}, -1, 1000
        s_mul_i32 s{sB}, s{sGRP}, 9216
        s_add_u32 s{sB}, s{sB}, s{sT1}
        s_add_u32 s{sB}, s{sB}, {GE_OFF}
        """)
        a(f"""
        s_mul_i32 s{sT0}, s{sGRP}, {R}
        s_lshr_b32 s{sT1}, s{sROLE}, 1
        s_add_u32 s{sT0}, s{sT0}, s{sT1}
        s_and_b32 s{sT1}, s{sROLE}, 1
        s_mul_i32 s{sT1}, s{sT1}, 56
        s_add_u32 s{sT0}, s{sT0}, s{sT1}
        s_sub_u32 s{sT0}, s{sT0}, s{sT2}
        v_and_b32 v{Fb+1}, 7, v0
        v_mad_u32_u24 v{Fb+2}, v{Fb+1}, 7, s{sT0}
        v_cmp_gt_u32 vcc, s{sT3}, v{Fb+2}
        v_lshl_add_u32 v{Fb+2}, v{Fb+2}, 3, v{Fb}
        v_mul_u32_u24 v{Fb+2}, 288, v{Fb+2}
        v_lshl_add_u32 v{Fb+2}, v1, 3, v{Fb+2}
        v_bfrev_b32 v{Fb+3}, 1
        v_cndmask_b32 v{vO}, v{Fb+3}, v{Fb+2}, vcc
        """)
        a("s_waitcnt lgkmcnt(0)")
        a("s_barrier")
        for t in range(9):
            if t == 4 or t == 8: a(f"s_add_u32 s{sB}, s{sB}, 4096")
            o = f" offset:{1024 * (t % 4)}" if t % 4 else ""
            a(f"buffer_load_dwordx4 {vr(GEr+4*t,4)}, v{vAd}, s[{SWS}:{SWS+3}], s{sB} offen{o} sc1")
        a(f"s_cmp_lg_u32 s{sLW}, 0")
        a("s_cbranch_scc1 L_nog")
        a("s_mov_b32 exec_hi, 0")
        a(f"v_lshlrev_b32 v{Fb+4}, 3, v0")
        a(f"v_add_u32 v{Fb+4}, 2048, v{Fb+4}")
        self.gather(Fb + 4, ACC, ACC + 18)
        a("s_mov_b64 exec, -1")
        a("s_waitcnt lgkmcnt(0)")
        a("L_nog:")
        a(f"""
        v_lshlrev_b32 v{vAd}, 7, v1
        v_lshl_add_u32 v{vAd}, v{Fb+1}, 4, v{vAd}
        v_add_u32 v{vAd}, {FE}, v{vAd}
        v_lshl_add_u32 v1, v1, 3, v{vO}
        s_barrier
        s_waitcnt vmcnt(0)
        s_barrier
        """)
        self.stamp(3)
        def rd(c):
            b = Fb + 8 * (c & 1)
            a(f"ds_read_b128 {vr(b,4)}, v{vAd} offset:{1024 * c}")
            if c < 4: a(f"ds_read_b128 {vr(b+4,4)}, v{vAd} offset:{1024 * c + 512}")
        rd(0); rd(1)
        for c in range(5):
            b = Fb + 8 * (c & 1); nv = 8 if c < 4 else 4
            a(f"s_waitcnt lgkmcnt({0 if c == 4 else (1 if c == 3 else 2)})")
            ge = GEr + 8 * c
            for h in range(0, nv, 2): a(f"v_pk_add_f32 {vr(ge+h,2)}, {vr(ge+h,2)}, {vr(b+h,2)}")
            if c + 2 <= 4: rd(c + 2)
            for h in range(nv): a(f"v_exp_f32 v{ge+h}, v{ge+h}")
            for h in range(0, nv, 2): a(f"v_pk_add_f32 {vr(ge+h,2)}, {vr(ge+h,2)}, 1.0 op_sel_hi:[1,0]")
            for h in range(nv): a(f"v_rcp_f32 v{ge+h}, v{ge+h}")
            for h in range(0, nv, 2): a(f"v_pk_fma_f32 {vr(ge+h,2)}, {vr(ge+h,2)}, -2.0, 1.0 op_sel_hi:[1,0,0]")
            for h in range(0, nv, 2): a(f"v_cvt_pk_bf16_f32 v{ge+h//2}, v{ge+h}, v{ge+h+1}")
            for t in range(9):
                cc = "0" if c == 0 else vr(ACC + 4 * t, 4)
                if c < 4: a(f"v_mfma_f32_16x16x32_bf16 {vr(ACC+4*t,4)}, {vr(WO+36*c+4*t,4)}, {vr(ge,4)}, {cc}")
                else: a(f"v_mfma_f32_16x16x16_bf16 {vr(ACC+4*t,4)}, {vr(WO+144+2*t,2)}, {vr(ge,2)}, {cc}")
        for cp in range(4):
            s = ACC + 8 * cp; d = Fb + 4 * cp
            for h in range(4): a(f"v_cvt_pk_bf16_f32 v{d+h}, v{s+2*h}, v{s+2*h+1}")
            o = f" offset:{64 * cp}" if cp else ""
            a(f"buffer_store_dwordx4 {vr(d,4)}, v1, s[{SOUT}:{SOUT+3}], 0 offen{o}")
        s = ACC + 32
        for h in range(2): a(f"v_cvt_pk_bf16_f32 v{GEr+h}, v{s+2*h}, v{s+2*h+1}")
        a(f"buffer_store_dwordx2 {vr(GEr,2)}, v{vO}, s[{SOUT}:{SOUT+3}], 0 offen offset:256")
        if self.dev:
            a("s_waitcnt vmcnt(0)"); self.stamp(4); self.dump()
        a("s_endpgm")

    def dump(self):
        a = self.a
        a(f"s_lshl_b32 s{sT0}, s2, 3\ns_add_u32 s{sT0}, s{sT0}, s{sWAVE}\ns_lshl_b32 s{sT0}, s{sT0}, 8\ns_add_u32 s{sT0}, s{sT0}, {STAMP_OFF}")
        if not self.isC:
            for i in range(36): a(f"v_writelane_b32 v255, s{64+i}, {i}")
        a(f"v_writelane_b32 v255, s{sGRP}, 62\nv_writelane_b32 v255, s{sROLE}, 63")
        a(f"v_lshlrev_b32 v1, 2, v0\nbuffer_store_dword v255, v1, s[{SWS}:{SWS+3}], s{sT0} offen")

    def afrags(self, dst, vad, vad8, base):
        a = self.a
        for c in range(5):
            for t in range(3):
                for h in range(2 if c < 4 else 1):
                    ro = base + (32 * c + 16 * h) * 288
                    d = dst + 12 * c + 4 * t + 2 * h if c < 4 else dst + 48 + 2 * t
                    if t < 2: a(f"ds_read_b64_tr_b16 {vr(d,2)}, v{vad} offset:{ro + 32 * t}")
                    else: a(f"ds_read_b64_tr_b16 {vr(d,2)}, v{vad8} offset:{ro + 256}")

    def smallgemm(self, acc, A, B):
        a = self.a
        for c in range(5):
            for t in range(3):
                cc = "0" if c == 0 else vr(acc + 4 * t, 4)
                if c < 4: a(f"v_mfma_f32_16x16x32_bf16 {vr(acc+4*t,4)}, {vr(A+12*c+4*t,4)}, {vr(B+4*c,4)}, {cc}")
                else: a(f"v_mfma_f32_16x16x16_bf16 {vr(acc+4*t,4)}, {vr(A+48+2*t,2)}, {vr(B+16,2)}, {cc}")
        a(f"s_mov_b32 s{sC1}, {hx(f2u(K2))}\ns_mov_b32 s{sC1+1}, {hx(f2u(K2))}")
        for h in range(0, 12, 2): a(f"v_pk_mul_f32 {vr(acc+h,2)}, {vr(acc+h,2)}, s[{sC1}:{sC1+1}]")

    def compute(self):
        a = self.a; self.isC = True
        aE = [2, 3, 4, 5]; aO = [6, 7, 8, 9]; cst = [10, 11, 12, 13]; aW = 14; l8 = 15
        ACC = 16; W = 32; X = 96
        vJ, vG = 172, 173
        vT8, vTw = 174, 175
        a("L_cw:")
        a(f"""
        v_and_b32 v{vJ}, 15, v0
        v_lshrrev_b32 v{vG}, 4, v0
        v_lshrrev_b32 v{vT8}, 2, v0
        v_mul_u32_u24 v{vT8}, 288, v{vT8}
        v_and_b32 v1, 3, v0
        v_lshl_add_u32 v{vT8}, v1, 3, v{vT8}
        s_lshl_b32 s{sT0}, s{sLW}, 6
        v_add_u32 v{vTw}, s{sT0}, v{vT8}
        s_cmp_gt_u32 s{sROLE}, 8
        s_cbranch_scc1 L_chelp
        v_lshlrev_b32 v{l8}, 3, v0
        v_mul_u32_u24 v{cst[0]}, 1056, v{vJ}
        v_lshl_add_u32 v{cst[0]}, v{vG}, 4, v{cst[0]}
        s_lshl_b32 s{sT0}, s{sLW}, 8
        v_add_u32 v{cst[0]}, s{sT0}, v{cst[0]}
        """)
        for c in (1, 2, 3):
            a(f"s_cmp_ge_u32 s{sLW}, {4 - c}\ns_cselect_b32 s{sT0}, 32, 0\nv_add_u32 v{cst[c]}, s{sT0}, v{cst[0]}")
        for r in range(1, 9):
            a(f"s_mov_b32 s{sTAB+r}, {EVEN[r]}\ns_mov_b32 s{sTAB+9+r}, {ODD[r]}\ns_mov_b32 s{sTAB+18+r}, {WSLOT[r%3]}")
        for c in range(4):
            a(f"v_add_u32 v{aE[c]}, {EVEN[0]}, v{cst[c]}\nv_add_u32 v{aO[c]}, {ODD[0]}, v{cst[c]}")
        a(f"v_add_u32 v{aW}, {WSLOT[0]}, v{l8}")
        for i in range(16): a(f"v_mov_b32 v{ACC+i}, 0")
        a(f"s_mov_b32 s{sR}, 0")
        def rdX(u):
            d = u >> 1; cl = (d >> 1) & 3
            off = 128 * d + (32 if d >= 8 else 0)
            return f"ds_read_b128 {vr(X+4*u,4)}, v{(aO if u & 1 else aE)[cl]} offset:{off}"
        def rdW(m, h): return f"ds_read_b64_tr_b16 {vr(W+4*m+2*h,2)}, v{aW} offset:{1024*m+512*h}"
        def Gm(m): return [rdW(m, 0), rdW(m, 1), rdX(m + 3)]
        first = [rdX(0), rdX(1), rdX(2)] + Gm(0) + Gm(1) + Gm(2) + Gm(3)
        def mf(m, i): return f"v_mfma_f32_16x16x32_bf16 {vr(ACC+4*i,4)}, {vr(W+4*m,4)}, {vr(X+4*(m+i),4)}, {vr(ACC+4*i,4)}"
        def inter(mfs, fill):
            n = len(mfs); k = 0
            for i, x in enumerate(mfs):
                a(x)
                upto = (len(fill) * (i + 1) + n - 1) // n
                while k < upto: a(fill[k]); k += 1
        a("s_waitcnt lgkmcnt(0)")
        self.stamp(0)
        a("s_barrier")
        self.stamp(1, 8)
        for x in first: a(x)
        a("L_c1:")
        for m in range(13):
            a("s_waitcnt lgkmcnt(9)")
            if m < 12: fill = Gm(m + 4)
            else:
                fill = [f"v_add_u32 v{aW}, s{sC}, v{l8}"]
                for c in range(4): fill += [f"v_add_u32 v{aE[c]}, s{sA}, v{cst[c]}", f"v_add_u32 v{aO[c]}, s{sB}, v{cst[c]}"]
            if m == 10: fill = fill + [f"s_add_u32 s{sR}, s{sR}, 1", f"s_min_u32 m0, s{sR}, 8"]
            if m == 11: fill = fill + [f"s_movrels_b32 s{sA}, s{sTAB}", f"s_movrels_b32 s{sB}, s{sTAB+9}", f"s_movrels_b32 s{sC}, s{sTAB+18}"]
            inter([mf(m, i) for i in range(4)], fill)
        if self.dev: a(f"s_add_u32 s{sT0}, s{sR}, 10")
        a(f"s_cmp_eq_u32 s{sR}, 9")
        a("s_waitcnt lgkmcnt(0)"); self.stamp(f"s{sT0}"); a("s_barrier")
        a("s_cbranch_scc1 L_c1tail")
        inter([mf(m, i) for m in (13, 14) for i in range(4)], first)
        a(f"s_cmp_gt_u32 s{sR}, 5")
        a("s_cbranch_scc1 L_c1")
        for i in range(4): a(mf(15, i))
        a("s_branch L_c1")
        a("L_c1tail:")
        W2 = 176
        HE = 200
        vHa, vHe = 216, 217
        vOne = 218
        self.vC1 = 220
        vW2a, vW2b = 222, 223
        TMP = 224
        A2 = 32
        H = 96
        def rdW2(k):
            b = W2 + 12 * (k & 1); o = 9216 * (k % 7)
            return [f"ds_read_b64_tr_b16 {vr(b+4*t+2*h,2)}, v{vW2a if t < 2 else vW2b} offset:{o + 4608*h + (32*t if t < 2 else 256)}"
                    for t in range(3) for h in range(2)]
        pre = [f"v_mov_b32 v{vW2a}, v{vTw}", f"v_mov_b32 v{vW2b}, v{vT8}"] + rdW2(0)
        pre += [f"s_mul_i32 s{sT0}, s{sGRP}, 14", f"s_sub_u32 s{sT0}, s{sT0}, 1", f"v_add_u32 v1, s{sT0}, v{vJ}",
                f"s_movk_i32 s{sT1}, 251", f"s_movk_i32 s{sT2}, 125",
                f"v_cmp_gt_u32 vcc, s{sT1}, v1", f"v_cmp_ne_u32 s[{sEX}:{sEX+1}], s{sT2}, v1",
                f"v_mov_b32 v{vOne}, 0x7f800000", f"s_and_b64 vcc, vcc, s[{sEX}:{sEX+1}]",
                f"v_mov_b32 v{self.vC1}, {hx(f2u(C1))}", f"v_mov_b32 v{self.vC1+1}, {hx(f2u(C1))}",
                f"v_cndmask_b32 v{vOne}, v{vOne}, 1.0, vcc",
                f"s_mov_b32 s{sC2}, {hx(f2u(C2))}", f"s_mov_b32 s{sC2+1}, {hx(f2u(C2))}",
                f"v_mov_b32 v{vOne+1}, v{vOne}"]
        inter([mf(m, i) for m in (13, 14) for i in range(4)], pre)
        a(f"""
        v_lshlrev_b32 v{vHa}, 11, v{vG}
        v_add_u32 v{vHa}, {HB}, v{vHa}
        s_lshl_b32 s{sT0}, s{sLW}, 5
        v_lshl_add_u32 v1, v{vJ}, 7, v{vHa}
        v_add_u32 v1, s{sT0}, v1
        v_mul_u32_u24 v{vHe}, 112, v{vJ}
        v_add_u32 v{vHa}, v{vHe}, v{vHa}
        v_add_u32 v{vHe}, s{sT0}, v{vHa}
        """)
        for i in range(4):
            self.gelu4(ACC + 4 * i, TMP + 4 * (i & 1), vOne)
            d = TMP + 8 + 4 * (i >> 1) + 2 * (i & 1)
            a(f"v_cvt_pk_bf16_f32 v{d}, v{ACC+4*i}, v{ACC+4*i+1}")
            a(f"v_cvt_pk_bf16_f32 v{d+1}, v{ACC+4*i+2}, v{ACC+4*i+3}")
            if i & 1: a(f"ds_write_b128 v1, {vr(TMP+8+4*(i>>1),4)} offset:{16*(i>>1)}")
        a("s_waitcnt lgkmcnt(0)")
        self.stamp(2)
        a("s_barrier")
        def rdH(q): return f"ds_read_b128 {vr(H+4*(q%16),4)}, v{vHa} offset:{16*q}"
        def rdE(q): return f"ds_read_b128 {vr(HE+4*(q%4),4)}, v{vHe} offset:{16*q}"
        for q in range(7): a(rdH(q))
        a(rdE(0)); a(rdE(1))
        for k in range(16):
            b = W2 + 12 * (k & 1)
            mfs = []
            for rho in range(7):
                for t in range(2):
                    d = A2 + 8 * rho + 4 * t
                    mfs.append(f"v_mfma_f32_16x16x32_bf16 {vr(d,4)}, {vr(b+4*t,4)}, {vr(H+4*((rho+k)%16),4)}, {vr(d,4) if k else 0}")
            for e in range(2):
                d = A2 + 56 + 4 * e
                mfs.append(f"v_mfma_f32_16x16x32_bf16 {vr(d,4)}, {vr(b+8,4)}, {vr(HE+4*((e+k)%4),4)}, {vr(d,4) if k else 0}")
            fill = []
            if k < 15:
                if (k + 1) % 7 == 0: fill += [f"v_add_u32 v{vW2a}, {7*9216}, v{vW2a}", f"v_add_u32 v{vW2b}, {7*9216}, v{vW2b}"]
                fill += rdW2(k + 1) + [rdH(k + 7), rdE(k + 2)]
            a("s_waitcnt lgkmcnt(0)")
            if k in (7, 11): self.stamp(21 if k == 7 else 22); a("s_barrier")
            inter(mfs[:10], fill)
            for x in mfs[10:]: a(x)
        a(f"""
        v_lshrrev_b32 v1, 3, v{vJ}
        v_mul_u32_u24 v1, {9*UNIT}, v1
        v_and_b32 v2, 7, v{vJ}
        v_lshl_add_u32 v2, v{vG}, 3, v2
        v_lshl_add_u32 v3, v2, 3, v1
        v_lshl_add_u32 v2, v2, 4, v1
        s_mul_i32 s{sA}, s{sGRP}, {MB*9}
        s_add_u32 s{sA}, s{sA}, s{sROLE}
        s_mul_i32 s{sA}, s{sA}, {UNIT}
        s_mul_i32 s{sB}, s{sLW}, {4*9*UNIT}
        s_add_u32 s{sB}, s{sB}, s{sA}
        s_add_u32 s{sC}, s{sB}, {2*9*UNIT}
        s_cmp_eq_u32 s{sLW}, 3
        s_cselect_b32 s{sC}, 0x8000000, s{sC}
        s_lshl_b32 s{sT0}, s{sLW}, 9
        s_add_u32 s{sA}, s{sA}, s{sT0}
        """)
        for rho in range(7):
            s = A2 + 8 * rho; d = TMP + 4 * (rho & 3)
            for h in range(4): a(f"v_cvt_pk_bf16_f32 v{d+h}, v{s+2*h}, v{s+2*h+1}")
            if rho: a(f"s_add_u32 s{sA}, s{sA}, {2*9*UNIT}")
            a(f"buffer_store_dwordx4 {vr(d,4)}, v2, s[{SWS}:{SWS+3}], s{sA} offen sc1")
        for e in range(2):
            s = A2 + 56 + 4 * e; d = A2 + 2 * e
            for h in range(2): a(f"v_cvt_pk_bf16_f32 v{d+h}, v{s+2*h}, v{s+2*h+1}")
            a(f"buffer_store_dwordx2 {vr(d,2)}, v3, s[{SWS}:{SWS+3}], s{sB if e == 0 else sC} offen offset:2048 sc1")
        self.stamp(3, 9)
        a("s_branch L_ccommon")
        AF = 32; BF = 96; AC = 16
        a("L_chelp:")
        a(f"s_cmp_lg_u32 s{sROLE}, 9")
        a("s_waitcnt lgkmcnt(0)")
        a("s_cbranch_scc1 L_chelp2")
        a(f"v_mul_u32_u24 v1, 288, v{vJ}\nv_lshl_add_u32 v1, v{vG}, 3, v1")
        for t in range(9): a(f"buffer_load_dwordx2 {vr(BF+2*t,2)}, v1, s[{SG}:{SG+3}], 0 offen offset:{32*t}")
        a(f"v_add_u32 v2, {LWG}, v{vTw}\nv_add_u32 v3, {LWG}, v{vT8}")
        a("s_barrier")
        self.afrags(AF, 2, 3, 0)
        a("s_waitcnt vmcnt(0) lgkmcnt(0)")
        self.smallgemm(AC, AF, BF)
        a(f"""
        v_lshlrev_b32 v1, 4, v0
        s_mul_i32 s{sA}, s{sGRP}, 9216
        s_add_u32 s{sA}, s{sA}, {GE_OFF}
        s_add_u32 s{sB}, s{sA}, 8192
        s_lshl_b32 s{sT0}, s{sLW}, 11
        s_add_u32 s{sA}, s{sA}, s{sT0}
        s_cmp_eq_u32 s{sLW}, 0
        s_cselect_b32 s{sB}, s{sB}, 0x8000000
        buffer_store_dwordx4 {vr(AC,4)}, v1, s[{SWS}:{SWS+3}], s{sA} offen sc1
        buffer_store_dwordx4 {vr(AC+4,4)}, v1, s[{SWS}:{SWS+3}], s{sA} offen offset:1024 sc1
        buffer_store_dwordx4 {vr(AC+8,4)}, v1, s[{SWS}:{SWS+3}], s{sB} offen sc1
        s_branch L_ccommon
        L_chelp2:
        s_lshl_b32 s{sT0}, s{sWAVE}, 4
        s_add_u32 s{sT0}, s{sT0}, s{sROLE}
        s_cmp_lg_u32 s{sT0}, 10
        s_cbranch_scc1 L_nozero
        v_lshrrev_b32 v1, 2, v0
        v_and_b32 v2, 3, v0
        v_lshlrev_b32 v2, 4, v2
        v_lshl_add_u32 v1, v1, 7, v2
        v_mov_b32 v4, 0
        v_mov_b32 v5, 0
        v_mov_b32 v6, 0
        v_mov_b32 v7, 0
        s_mul_i32 s{sT0}, s{sGRP}, {MB*128}
        s_add_u32 s{sT0}, s{sT0}, {FLAG_OFF}
        s_mov_b32 exec_hi, 0xffffff
        buffer_store_dwordx4 v[4:7], v1, s[{SWS}:{SWS+3}], s{sT0} offen sc1
        s_lshl_b32 s{sT0}, s{sGRP}, 2
        v_mov_b32 v2, 1
        s_mov_b64 exec, 1
        s_waitcnt vmcnt(0)
        buffer_store_dword v2, off, s[{SDBG}:{SDBG+3}], s{sT0} sc1
        s_mov_b64 exec, -1
        L_nozero:
        s_barrier
        L_ccommon:
        s_mul_i32 s{sD}, s{sGRP}, {MB*128}
        s_add_u32 s{sD}, s{sD}, {FLAG_OFF}
        s_lshl_b32 s{sT0}, s{sROLE}, 2
        v_lshl_add_u32 v7, v0, 7, s{sT0}
        v_mov_b32 v8, 1
        s_waitcnt vmcnt(0)
        """)
        self.stamp(4)
        a("s_barrier")
        a(f"""
        s_cmp_lg_u32 s{sWAVE}, 0
        s_cbranch_scc1 L_noadd
        s_cmp_gt_u32 s{sROLE}, 9
        s_cbranch_scc1 L_noadd
        s_mov_b64 exec, 0x3fff
        buffer_store_dword v8, v7, s[{SWS}:{SWS+3}], s{sD} offen sc1
        s_mov_b64 exec, -1
        L_noadd:
        """)
        self.afrags(AF, vTw, vT8, LWF)
        a(f"""
        s_lshl_b32 s{sT0}, s{sLW}, 9
        v_lshlrev_b32 v4, 3, v0
        v_add_u32 v4, s{sT0}, v4
        v_and_b32 v2, 7, v{vJ}
        v_lshl_add_u32 v2, v{vG}, 3, v2
        v_lshlrev_b32 v3, 3, v2
        v_lshlrev_b32 v2, 4, v2
        v_add_u32 v3, {FB+2048}, v3
        v_add_u32 v5, {FE}, v2
        s_lshl_b32 s{sT0}, s{sLW}, 10
        v_add_u32 v6, s{sT0}, v5
        v_add_u32 v2, {FB}, v2
        s_cmp_lg_u32 s{sWAVE}, 1
        s_cbranch_scc1 L_nopoll
        s_lshl_b32 s{sT0}, s{sROLE}, 7
        s_add_u32 s{sT0}, s{sT0}, s{sD}
        s_mov_b32 s{sT1}, 0
        v_lshlrev_b32 v7, 2, v0
        s_mov_b64 exec, 0x3ff
        L_poll:
        buffer_load_dword v1, v7, s[{SWS}:{SWS+3}], s{sT0} offen sc1
        s_add_u32 s{sT1}, s{sT1}, 1
        s_waitcnt vmcnt(0)
        v_cmp_ne_u32 vcc, 1, v1
        s_cbranch_vccz L_polld
        s_cmp_lt_u32 s{sT1}, 0x40000
        s_cbranch_scc1 L_poll
        L_polld:
        s_mov_b64 exec, -1
        L_nopoll:
        s_waitcnt lgkmcnt(0)
        """)
        self.stamp(5)
        a("s_barrier")
        self.vC1 = 220
        self.gather(4, BF, BF + 20)
        a("s_waitcnt lgkmcnt(0)")
        self.stamp(6)
        a("s_barrier")
        for c in range(4): a(f"ds_read_b128 {vr(BF+4*c,4)}, v2 offset:{512*c}")
        a(f"ds_read_b64 {vr(BF+16,2)}, v3")
        a("s_waitcnt lgkmcnt(0)")
        self.smallgemm(AC, AF, BF)
        a(f"ds_write_b128 v6, {vr(AC,4)}")
        a(f"ds_write_b128 v6, {vr(AC+4,4)} offset:512")
        a(f"ds_write_b128 v5, {vr(AC+8,4)} offset:4096")
        a("s_waitcnt lgkmcnt(0)")
        self.stamp(7)
        a("s_barrier")
        if self.dev: self.dump()
        a("L_end:")
        a("s_endpgm")

    def build(self):
        self.prologue(); self.loader(); self.compute()
        body = self.a.finish()
        ref = open(f"cdna_kernels/{NAME}.s.ref").read().split('\n')
        head = [l for l in ref if l.startswith(';') and '@launch' not in l]
        out = '\n'.join(head) + f"\n; @launch grid=({NWG},1,1) block=(512,1,1) lds=163840\n"
        out += f""".amdgcn_target "amdgcn-amd-amdhsa--gfx950"
.text
.globl {NAME}_kernel
.p2align 8
.type {NAME}_kernel,@function
{NAME}_kernel:
{body}.section .rodata,"a"
.p2align 6
.amdhsa_kernel {NAME}_kernel
  .amdhsa_next_free_vgpr 256
  .amdhsa_next_free_sgpr 102
  .amdhsa_accum_offset 256
  .amdhsa_group_segment_fixed_size 0
  .amdhsa_kernarg_size 80
  .amdhsa_user_sgpr_count 2
  .amdhsa_user_sgpr_kernarg_segment_ptr 1
  .amdhsa_system_sgpr_workgroup_id_x 1
.end_amdhsa_kernel
"""
        return out

if __name__ == "__main__":
    dev = "dev" in sys.argv[2:]
    open(sys.argv[1], "w").write(Gen(dev).build())

def check_ws(ws, fpre, ge, bf):
    import numpy as np
    p = bf(ws[:GE_OFF].view(np.uint16)).reshape(G, MB, 9, UNIT // 2)
    s = p.sum(axis=2)
    main = s[:, :, :1024].reshape(G, MB, 4, 4, 8, 2, 4)
    full = np.zeros((G, MB, 8, 144), np.float32)
    for w in range(4):
        for gg in range(4):
            for hf in range(2):
                full[:, :, :, 32*w + 16*hf + 4*gg: 32*w + 16*hf + 4*gg + 4] = main[:, :, w, gg, :, hf, :]
    ex = s[:, :, 1024:].reshape(G, MB, 4, 8, 4)
    for gg in range(4): full[:, :, :, 128 + 4*gg:132 + 4*gg] = ex[:, :, gg]
    worst = []
    for grp in range(G):
        m = 0
        for u in range(MB):
            for row in range(8):
                Fv = R*grp + (u >> 1) + 7*(8*(u & 1) + row)
                if Fv < 1000: r = fpre[0, Fv]
                elif 1008 <= Fv < 2008: r = fpre[1, Fv - 1008]
                else: continue
                d = np.abs(full[grp, u, row] - r)
                m = max(m, np.inf if np.isnan(d).any() else d.max())
        worst.append(round(float(m), 4))
    print("fpre err per group", worst, "scale", np.abs(fpre).mean())
    gw = ws[GE_OFF:GE_OFF + G*9216].view(np.float32).reshape(G, 9, 4, 16, 4)
    gr = (ge.reshape(16, 9, 4, 4) * K2).transpose(1, 2, 0, 3)
    print("ge err", np.abs(gw - gr[None]).max())
```

```python
import sys, struct
from asmlib import Asm, vr, sr

NAME = "standalone__seq2seq_rnn_t_joint__speech"
def f2u(x): return struct.unpack('<I', struct.pack('<f', x))[0]
def hx(x): return hex(x & 0xffffffff)

R = 112; G = 18; MB = 14; NWG = G * MB
XBYTES = 2304000; WBYTES = 1285632; GBYTES = 4608; MBYTES = 41472; OBYTES = 4608000
UNIT = 2304
GE_OFF = NWG * 9 * UNIT
FLAG_OFF = GE_OFF + G * 9216
STAMP_OFF = FLAG_OFF + NWG * 128
WS_USED = STAMP_OFF + NWG * 8 * 256
OOB = 0x80000000
XS = 17952; WSL = 16384
HB = 163840 - 8192
XL4 = HB - XS; W2s = XL4 - WSL; X3 = W2s - XS; W1s = X3 - WSL; X2 = W1s - XS
W0s = X2 - WSL; X1 = W0s - XS; X0 = X1 - XS
assert X0 >= 0 and X0 % 32 == 0
XSL = [X0, X1, X2, X3]; WSLOT = [W0s, W1s, W2s]
assert X2 >= 4 * 9216 and X3 >= 8 * 9216 and HB >= 16 * 9216
LWF = 0; LWO = 41472; LWG = 82944; FB = 126976; FE = 131072
EVEN = [X0, X0 + 64, X2, X2 + 64, X0, X0 + 64, X2, X2 + 64, XL4]
ODD = [XL4 + 64, X1, X1 + 64, X3, X3 + 64, X1, X1 + 64, X3, X3 + 64]
ITEM = [0, 5, 1, 6, 2, 7, 3, 8]
ROLE = [0, 1, 9, 2, 3, 10, 4, 5, 11, 6, 7, 12, 8, 13]
C1 = -2.3022082; C2 = -0.10294324; K2 = 2.8853900817779268

SX, SW1, SW2, SG, SWF, SWG, SWO, SOUT, SDBG, SWS = 4, 8, 12, 16, 20, 24, 28, 32, 36, 40
sGRP, sROLE, sWAVE, sLW = 44, 45, 46, 47
sT0, sT1, sT2, sT3 = 48, 49, 50, 51
sA, sB, sC, sD = 52, 53, 54, 55
sEX = 56
sC1, sC2 = 58, 60
sR = 62
sK2 = 63
sTAB = 64
sST = 100

class Gen:
    def __init__(self, dev=False, opts=()):
        self.a = Asm(); self.dev = dev; self.nst = 0; self.o = set(opts); self.lite = "lite" in self.o

    def stamp(self, idx, clk=None):
        if not self.dev: return
        if self.lite and (isinstance(idx, str) or 11 <= idx <= 18 or 20 <= idx <= 31): return
        a = self.a
        for op, ix in (("s_memrealtime", idx), ("s_memtime", clk)):
            if ix is None: continue
            a(f"{op} s[{sST}:{sST+1}]")
            a("s_waitcnt lgkmcnt(0)")
            if self.isC:
                if isinstance(ix, str):
                    a(f"s_mov_b32 m0, {ix}"); ix = "m0"
                a(f"v_writelane_b32 v255, s{sST}, {ix}")
            else: a(f"s_mov_b32 s{64+ix}, s{sST}")

    def cyc(self, k):
        if self.dev and "cyc" in self.o: self.a(f"s_memtime s[{92+2*k}:{93+2*k}]")
    def cycflush(self, base, n):
        if self.dev and "cyc" in self.o:
            self.a("s_waitcnt lgkmcnt(0)")
            for k in range(n): self.a(f"v_writelane_b32 v255, s{92+2*k}, {base+k}")

    def srd(self, s, off, nbytes):
        a = self.a
        a(f"s_load_dwordx2 s[{s}:{s+1}], s[0:1], {off}")
        a(f"s_mov_b32 s{s+2}, {nbytes}")
        a(f"s_mov_b32 s{s+3}, 0x20000")

    def prologue(self):
        a = self.a
        a(f"s_cmp_ge_u32 s2, {NWG}")
        a("s_cbranch_scc1 L_end")
        for s, off, n in ((SX, 0, XBYTES), (SW1, 8, WBYTES), (SW2, 16, WBYTES), (SG, 24, GBYTES), (SWF, 32, MBYTES),
                          (SWG, 40, MBYTES), (SWO, 48, MBYTES), (SOUT, 56, OBYTES), (SDBG, 64, 256), (SWS, 72, WS_USED)):
            self.srd(s, off, n)
        a(f"""
        v_lshrrev_b32 v1, 6, v0
        v_and_b32 v0, 63, v0
        s_and_b32 s{sT0}, s2, 7
        v_readfirstlane_b32 s{sWAVE}, v1
        s_lshr_b32 s{sT1}, s2, 3
        s_sub_i32 s{sT2}, s{sT0}, 4
        s_max_i32 s{sT2}, s{sT2}, 0
        s_lshl_b32 s{sT0}, s{sT0}, 5
        s_sub_u32 s{sT0}, s{sT0}, s{sT2}
        s_add_u32 s{sT0}, s{sT0}, s{sT1}
        s_mul_i32 s{sGRP}, s{sT0}, 4682
        s_lshr_b32 s{sGRP}, s{sGRP}, 16
        s_mul_i32 s{sT1}, s{sGRP}, {MB}
        s_sub_u32 s{sT0}, s{sT0}, s{sT1}
        s_lshl_b32 s{sT0}, s{sT0}, 2
        """)
        for L in range(NWG): assert (L * 4682) >> 16 == L // MB
        tab = sum(r << (4 * i) for i, r in enumerate(ROLE))
        a(f"""
        s_mov_b32 s{sT2}, {hx(tab)}
        s_mov_b32 s{sT3}, {hx(tab >> 32)}
        s_lshr_b64 s[{sT2}:{sT3}], s[{sT2}:{sT3}], s{sT0}
        s_and_b32 s{sROLE}, s{sT2}, 15
        s_and_b32 s{sLW}, s{sWAVE}, 3
        s_cmp_lt_u32 s{sWAVE}, 4
        s_cbranch_scc1 L_cw
        """)

    def dma(self, v, srd, soff, off=0):
        o = f" offset:{off}" if off else ""
        self.a(f"buffer_load_dwordx4 v{v}, s[{srd}:{srd+3}], {soff} offen{o} lds")

    def load_mat(self, srd, lds, vM):
        a = self.a
        for i in range(11):
            if i % 4 == 0:
                a(f"s_add_u32 m0, s{sA}, {lds + 1024 * i}")
                a(f"s_mov_b32 s{sT0}, {1024 * i}")
            if i == 10: a("s_mov_b64 exec, 0xff")
            self.dma(vM, srd, f"s{sT0}", 1024 * (i % 4))
        a("s_mov_b64 exec, -1")

    def loader(self):
        a = self.a; self.isC = False
        vW, vW0, vT, vU, vN = 2, 3, 4, 5, 6
        fA = [8 + q for q in range(5)]; fB = [13 + q for q in range(5)]
        vA1, vA0, vM1, vM0, vMat = 18, 19, 20, 21, 22
        a(f"""
        v_lshlrev_b32 v{vMat}, 4, v0
        s_mul_i32 s{sA}, s{sLW}, 10368
        v_add_u32 v{vMat}, s{sA}, v{vMat}
        s_cmp_gt_u32 s{sROLE}, 8
        s_cbranch_scc1 L_lhelp
        """)
        a(f"""
        v_and_b32 v{vT}, 24, v0
        v_lshrrev_b32 v{vU}, 5, v0
        v_lshl_add_u32 v{vT}, v{vU}, 2, v{vT}
        v_bfe_u32 v{vU}, v0, 1, 2
        v_add_u32 v{vT}, v{vT}, v{vU}
        v_mul_u32_u24 v{vW}, 288, v{vT}
        v_and_b32 v{vU}, 1, v0
        v_lshl_add_u32 v{vW}, v{vU}, 4, v{vW}
        s_mul_i32 s{sT0}, s{sLW}, 82944
        s_lshl_b32 s{sT1}, s{sROLE}, 5
        s_add_u32 s{sT0}, s{sT0}, s{sT1}
        v_add_u32 v{vW}, s{sT0}, v{vW}
        v_subrev_u32 v{vW0}, 4608, v{vW}
        v_bfrev_b32 v1, 1
        v_cmp_gt_i32 vcc, 0, v{vW0}
        v_cndmask_b32 v{vW0}, v{vW0}, v1, vcc
        """)
        a(f"""
        s_mul_i32 s{sT0}, s{sGRP}, {R}
        s_sub_u32 s{sT0}, s{sT0}, 12
        v_lshrrev_b32 v{vU}, 3, v0
        v_add_u32 v{vU}, s{sT0}, v{vU}
        v_and_b32 v{vT}, 7, v0
        v_lshlrev_b32 v{vT}, 4, v{vT}
        s_lshl_b32 s{sT1}, s{sLW}, 3
        s_movk_i32 s{sB}, 1152
        s_movk_i32 s{sC}, 999
        """)
        def faddr(dst, q, plus):
            if q < 4:
                a(f"s_add_u32 s{sT2}, s{sT1}, {32 * q + plus}")
                a(f"v_add_u32 v{vN}, s{sT2}, v{vU}")
            else:
                a(f"v_add_u32 v{vN}, {128 + plus}, v{vU}")
            a(f"""
            v_cmp_lt_i32 vcc, s{sC}, v{vN}
            v_add_u32 v7, -8, v{vN}
            v_cndmask_b32 v7, v{vN}, v7, vcc
            v_cmp_lt_u32 s[{sEX}:{sEX+1}], s{sC}, v7
            v_mad_u32_u24 v{dst}, v7, s{sB}, v{vT}
            s_xor_b64 vcc, vcc, s[{sEX}:{sEX+1}]
            v_cndmask_b32 v{dst}, v{dst}, v1, vcc
            """)
        for q in range(5): faddr(fA[q], q, 0)
        a(f"""
        s_lshl_b32 s{sD}, s{sLW}, 4
        s_mul_i32 s{sT3}, s{sLW}, 1056
        s_lshl_b32 s{sR}, s{sLW}, 10
        s_waitcnt lgkmcnt(0)
        """)
        sX17 = sC1
        a(f"s_mov_b64 s[{sX17}:{sX17+1}], 0xffff")
        a(f"s_lshl_b64 s[{sX17}:{sX17+1}], s[{sX17}:{sX17+1}], s{sD}")
        sLX, sLWk = sC2, sR
        a(f"s_mov_b32 s{sLX}, s{sT3}")
        def xitem(l, slot):
            regs = fA if l <= 6 else fB
            a(f"s_movk_i32 s{sT0}, {256 + 128 * l if l <= 6 else 128 * (l - 7)}")
            for q in range(4):
                a(f"s_add_u32 m0, s{sLX}, {slot + 1056 * 4 * q}")
                self.dma(regs[q], SX, f"s{sT0}")
            a(f"s_mov_b32 m0, {slot + 1056 * 16}")
            a(f"s_mov_b64 exec, s[{sX17}:{sX17+1}]")
            self.dma(regs[4], SX, f"s{sT0}")
            a("s_mov_b64 exec, -1")
        def wstep(r):
            for q in range(4):
                a(f"s_add_u32 m0, s{sLWk}, {WSLOT[r % 3] + 4096 * q}")
                if q == 0 and r == 0:
                    self.dma(vW0, SW1, "0")
                else:
                    a(f"s_mov_b32 s{sT0}, {331776 * q + 9216 * r - 4608}")
                    self.dma(vW, SW1, f"s{sT0}")
        def step(r):
            if r < 8: xitem(ITEM[r], XSL[r % 4])
            if r == 0: xitem(4, XL4)
            wstep(r)
        self.stamp(0)
        step(0); step(1); self.stamp(25)
        a(f"s_lshl_b32 s{sT1}, s{sLW}, 3")
        for q in range(5): faddr(fB[q], q, 1)
        a(f"""
        s_mul_i32 s{sT0}, s{sROLE}, 4608
        s_mul_i32 s{sT1}, s{sLW}, 82944
        s_add_u32 s{sT0}, s{sT0}, s{sT1}
        v_lshlrev_b32 v{vA1}, 4, v0
        v_add_u32 v{vA1}, s{sT0}, v{vA1}
        v_lshrrev_b32 v{vT}, 5, v0
        v_mul_u32_u24 v{vT}, {41472 - 4608}, v{vT}
        v_add_u32 v{vM1}, 4096, v{vA1}
        v_add_u32 v{vM1}, v{vT}, v{vM1}
        v_subrev_u32 v{vA0}, 41472, v{vA1}
        v_subrev_u32 v{vM0}, 41472, v{vM1}
        s_cmp_eq_u32 s{sLW}, 0
        s_cselect_b64 vcc, -1, 0
        v_cndmask_b32 v{vA0}, v{vA0}, v1, vcc
        s_mov_b32 vcc_hi, 0
        v_cndmask_b32 v{vM0}, v{vM0}, v1, vcc
        s_mul_i32 s{sB}, s{sLW}, 9216
        """)
        def w2grp(g):
            if g: a(f"s_mov_b32 s{sT0}, {g * 331776 - 41472}")
            so = f"s{sT0}" if g else "0"
            a(f"s_add_u32 m0, s{sB}, {36864 * g}")
            for i in range(4): self.dma(vA1 if g else vA0, SW2, so, 1024 * i)
            a(f"s_add_u32 m0, s{sB}, {36864 * g + 4096}")
            self.dma(vM1 if g else vM0, SW2, so)
            a(f"s_add_u32 m0, s{sB}, {36864 * g + 5120}")
            a(f"s_mov_b32 s{sT0}, {g * 331776 + 512}")
            for i in range(4): self.dma(vA1, SW2, f"s{sT0}", 1024 * i)
        a("s_waitcnt vmcnt(9)"); self.stamp(1); a("s_barrier")
        step(2)
        bar = "s_nop 0" if "nobar" in self.o else "s_barrier"
        for r in range(1, 7):
            a("s_waitcnt vmcnt(9)"); self.stamp(10 + r); a(bar)
            if "nodma" not in self.o: step(r + 2)
            self.stamp(25 + r)
        a("s_waitcnt vmcnt(4)"); self.stamp(17); a(bar)
        if "nobar" in self.o: a("s_waitcnt vmcnt(0)"); self.stamp(10)
        w2grp(0)
        a("s_waitcnt vmcnt(9)"); self.stamp(18); a(bar)
        w2grp(1)
        a("s_waitcnt vmcnt(9)"); self.stamp(19); a("s_barrier")
        a("s_waitcnt vmcnt(0)"); self.stamp(20); a("s_barrier")
        w2grp(2); w2grp(3)
        a("s_waitcnt vmcnt(9)"); self.stamp(21); a("s_barrier")
        self.load_mat(SWF, LWF, vMat)
        a("s_waitcnt vmcnt(11)"); self.stamp(22); a("s_barrier")
        self.load_mat(SWO, LWO, vMat)
        a("s_branch L_lcommon")
        a("L_lhelp:")
        self.prefetch()
        a(f"s_cmp_lg_u32 s{sROLE}, 9")
        a("s_cbranch_scc1 L_lhelp2")
        self.load_mat(SWG, LWG, vMat)
        a("L_lhelp2:")
        a("s_waitcnt vmcnt(0)\ns_barrier")
        if "nohw" not in self.o:
            self.load_mat(SWF, LWF, vMat)
            self.load_mat(SWO, LWO, vMat)
        a("L_lcommon:")
        a(f"""
        s_cmp_lg_u32 s{sLW}, 0
        s_cbranch_scc1 L_nochk
        s_lshl_b32 s{sT0}, s{sGRP}, 2
        s_mov_b32 s{sT1}, 0
        L_chk:
        buffer_load_dword v1, off, s[{SDBG}:{SDBG+3}], s{sT0} sc1
        s_add_u32 s{sT1}, s{sT1}, 1
        s_waitcnt vmcnt(0)
        v_readfirstlane_b32 s{sT2}, v1
        s_cmp_lg_u32 s{sT2}, 0
        s_cbranch_scc1 L_nochk
        s_cmp_lt_u32 s{sT1}, 0x40000
        s_cbranch_scc1 L_chk
        L_nochk:
        """)
        a("s_waitcnt vmcnt(0)"); self.stamp(2); a("s_barrier")
        self.loader_p2()

    def prefetch(self):
        a = self.a
        sX, sCU = sB, sC
        a(f"""
        s_and_b32 s{sX}, s2, 7
        s_mul_i32 s{sCU}, s{sGRP}, 5
        s_add_u32 s{sCU}, s{sCU}, s{sROLE}
        s_mul_i32 s{sT0}, s{sX}, 11
        s_cmp_gt_u32 s{sX}, 2
        s_addc_u32 s{sT0}, s{sT0}, 9
        s_sub_u32 s{sCU}, s{sCU}, s{sT0}
        v_bfrev_b32 v1, 1
        s_cmp_gt_u32 s{sCU}, 10
        s_cselect_b32 s{sT0}, 3, s{sLW}
        s_cmp_eq_u32 s{sT0}, 3
        s_waitcnt lgkmcnt(0)
        s_cbranch_scc1 L_pfd
        """)
        self.stamp(0)
        a(f"""
        s_cmp_eq_u32 s{sLW}, 2
        s_cbranch_scc1 L_pfx
        s_mul_i32 s{sT0}, s{sCU}, 105
        s_lshl_b32 s{sT1}, s{sLW}, 6
        v_add_u32 v3, s{sT1}, v0
        v_add_u32 v2, s{sT0}, v3
        v_mul_u32_u24 v4, 911, v2
        v_lshrrev_b32 v4, 16, v4
        v_mul_u32_u24 v4, {82944 - 72 * 128}, v4
        v_lshl_add_u32 v2, v2, 7, v4
        v_cmp_gt_u32 vcc, 105, v3
        v_cndmask_b32 v2, v1, v2, vcc
        v_subrev_u32 v3, 4608, v2
        buffer_load_dword v5, v3, s[{SW1}:{SW1+3}], 0 offen
        """)
        for r in range(1, 9):
            a(f"s_mov_b32 s{sT0}, {9216 * r - 4608}")
            a(f"buffer_load_dword v5, v2, s[{SW1}:{SW1+3}], s{sT0} offen")
        a(f"""
        s_branch L_pfw2
        L_pfx:
        s_mul_i32 s{sT0}, s{sX}, 9
        s_lshr_b32 s{sT0}, s{sT0}, 2
        s_mul_i32 s{sT0}, s{sT0}, {R}
        s_cmp_gt_u32 s{sX}, 3
        s_cselect_b32 s{sT1}, 20, 12
        s_sub_u32 s{sT0}, s{sT0}, s{sT1}
        s_cmp_eq_u32 s{sX}, 3
        s_cselect_b32 s{sT1}, 43, 33
        s_mul_i32 s{sT2}, s{sT1}, s{sCU}
        s_add_u32 s{sT0}, s{sT0}, s{sT2}
        s_mul_i32 s{sT0}, s{sT0}, 1152
        v_mul_u32_u24 v2, 1152, v0
        v_add_u32 v2, s{sT0}, v2
        v_cmp_gt_u32 vcc, s{sT1}, v0
        v_cndmask_b32 v2, v1, v2, vcc
        """)
        for l in (0, 4, 5, 1, 6, 2, 7, 3, 8):
            a(f"buffer_load_dword v5, v2, s[{SX}:{SX+3}], 0 offen offset:{256 + 128 * l}")
        a(f"""
        L_pfw2:
        s_mul_i32 s{sT0}, s{sLW}, 11
        s_add_u32 s{sT0}, s{sT0}, s{sCU}
        s_lshl_b32 s{sT0}, s{sT0}, 13
        v_lshlrev_b32 v2, 7, v0
        """)
        self.stamp(5)
        if self.dev and not self.lite: a("s_waitcnt vmcnt(8)"); self.stamp(6); a("s_waitcnt vmcnt(0)"); self.stamp(7)
        for i in range(5):
            if i: a(f"s_add_u32 s{sT0}, s{sT0}, {33 * 8192}")
            a(f"buffer_load_dword v5, v2, s[{SW2}:{SW2+3}], s{sT0} offen")
        self.stamp(8)
        if self.dev: a("s_waitcnt vmcnt(0)"); self.stamp(9)
        a("L_pfd:")

    def gelu4(self, x, t, one):
        a = self.a
        o = vr(one, 2) if one is not None else "1.0"
        for h in (0, 2): a(f"v_pk_mul_f32 {vr(t+h,2)}, {vr(x+h,2)}, {vr(x+h,2)}")
        for h in (0, 2): a(f"v_pk_fma_f32 {vr(t+h,2)}, {vr(t+h,2)}, s[{sC2}:{sC2+1}], {vr(self.vC1,2)}")
        for h in (0, 2): a(f"v_pk_mul_f32 {vr(t+h,2)}, {vr(t+h,2)}, {vr(x+h,2)}")
        for h in range(4): a(f"v_exp_f32 v{t+h}, v{t+h}")
        for h in (0, 2):
            if one is None: a(f"v_pk_add_f32 {vr(t+h,2)}, {vr(t+h,2)}, 1.0 op_sel_hi:[1,0]")
            else: a(f"v_pk_add_f32 {vr(t+h,2)}, {vr(t+h,2)}, {o}")
        for h in range(4): a(f"v_rcp_f32 v{t+h}, v{t+h}")
        for h in (0, 2): a(f"v_pk_mul_f32 {vr(x+h,2)}, {vr(x+h,2)}, {vr(t+h,2)}")

    def gather(self, vo, P, T):
        a = self.a
        a(f"s_mul_i32 s{sT0}, s{sGRP}, {MB}")
        a(f"s_add_u32 s{sT0}, s{sT0}, s{sROLE}")
        a(f"s_mul_i32 s{sT0}, s{sT0}, {9 * UNIT}")
        for n in range(9):
            if n and n % 2 == 0: a(f"s_add_u32 s{sT0}, s{sT0}, {2 * UNIT}")
            o = f" offset:{UNIT}" if n % 2 else ""
            a(f"buffer_load_dwordx2 {vr(P+2*n,2)}, v{vo}, s[{SWS}:{SWS+3}], s{sT0} offen{o} sc1")
        a(f"s_mov_b32 s{sC2}, {hx(f2u(C2))}\ns_mov_b32 s{sC2+1}, {hx(f2u(C2))}")
        a(f"v_mov_b32 v{self.vC1}, {hx(f2u(C1))}\nv_mov_b32 v{self.vC1+1}, {hx(f2u(C1))}")
        a(f"s_mov_b32 s{sT1}, 0xffff0000")
        for n in range(9):
            a(f"s_waitcnt vmcnt({8-n})")
            if self.isC and n in (0, 8): self.cyc(1 if n == 0 else 2)
            d = T if n == 0 else T + 4
            for h in (0, 1):
                a(f"v_lshlrev_b32 v{d+2*h}, 16, v{P+2*n+h}")
                a(f"v_and_b32 v{d+2*h+1}, s{sT1}, v{P+2*n+h}")
            if n:
                for h in (0, 2): a(f"v_pk_add_f32 {vr(T+h,2)}, {vr(T+h,2)}, {vr(T+4+h,2)}")
        self.gelu4(T, T + 4, None)
        a(f"v_cvt_pk_bf16_f32 v{T}, v{T}, v{T+1}")
        a(f"v_cvt_pk_bf16_f32 v{T+1}, v{T+2}, v{T+3}")
        a(f"v_add_u32 v{vo}, {FB}, v{vo}")
        a(f"ds_write_b64 v{vo}, {vr(T,2)}")

    def loader_p2(self):
        a = self.a
        WO = 94
        GEr = 58
        ACC = 20
        Fb = 4
        vAd, vO = 2, 3
        self.vC1 = 56
        a(f"""
        v_lshrrev_b32 v{vAd}, 2, v0
        v_mul_u32_u24 v{vAd}, 288, v{vAd}
        v_and_b32 v1, 3, v0
        v_lshl_add_u32 v{vO}, v1, 3, v{vAd}
        v_lshl_add_u32 v{vAd}, v1, 4, v{vAd}
        v_add_u32 v{vO}, {LWO}, v{vO}
        v_add_u32 v{vAd}, {LWO}, v{vAd}
        """)
        n = 0
        for c in range(5):
            for t in range(9):
                for h in range(2 if c < 4 else 1):
                    ro = (32 * c + 16 * h) * 288
                    d = WO + 36 * c + 4 * t + 2 * h if c < 4 else WO + 144 + 2 * t
                    if t < 8: a(f"ds_read_b64_tr_b16 {vr(d,2)}, v{vAd} offset:{ro + 64 * (t >> 1) + 8 * (t & 1)}")
                    else: a(f"ds_read_b64_tr_b16 {vr(d,2)}, v{vO} offset:{ro + 256}")
        a(f"""
        v_lshrrev_b32 v1, 4, v0
        v_lshlrev_b32 v{vAd}, 8, v1
        v_bfe_u32 v{Fb}, v0, 3, 1
        s_lshl_b32 s{sT0}, s{sLW}, 1
        v_add_u32 v{Fb}, s{sT0}, v{Fb}
        v_lshl_add_u32 v{vAd}, v{Fb}, 4, v{vAd}
        s_cmp_gt_u32 s{sGRP}, 8
        s_cselect_b32 s{sT1}, 128, 0
        s_cselect_b32 s{sT2}, 8, 0
        s_cselect_b32 s{sT3}, -1, 1000
        s_mul_i32 s{sB}, s{sGRP}, 9216
        s_add_u32 s{sB}, s{sB}, s{sT1}
        s_add_u32 s{sB}, s{sB}, {GE_OFF}
        """)
        a(f"""
        s_mul_i32 s{sT0}, s{sGRP}, {R}
        s_lshr_b32 s{sT1}, s{sROLE}, 1
        s_add_u32 s{sT0}, s{sT0}, s{sT1}
        s_and_b32 s{sT1}, s{sROLE}, 1
        s_mul_i32 s{sT1}, s{sT1}, 56
        s_add_u32 s{sT0}, s{sT0}, s{sT1}
        s_sub_u32 s{sT0}, s{sT0}, s{sT2}
        v_and_b32 v{Fb+1}, 7, v0
        v_mad_u32_u24 v{Fb+2}, v{Fb+1}, 7, s{sT0}
        v_cmp_gt_u32 vcc, s{sT3}, v{Fb+2}
        v_lshl_add_u32 v{Fb+2}, v{Fb+2}, 3, v{Fb}
        v_mul_u32_u24 v{Fb+2}, 288, v{Fb+2}
        v_lshl_add_u32 v{Fb+2}, v1, 3, v{Fb+2}
        v_bfrev_b32 v{Fb+3}, 1
        v_cndmask_b32 v{vO}, v{Fb+3}, v{Fb+2}, vcc
        """)
        a("s_waitcnt lgkmcnt(0)")
        a("s_barrier")
        for t in range(9):
            if t == 4 or t == 8: a(f"s_add_u32 s{sB}, s{sB}, 4096")
            o = f" offset:{1024 * (t % 4)}" if t % 4 else ""
            a(f"buffer_load_dwordx4 {vr(GEr+4*t,4)}, v{vAd}, s[{SWS}:{SWS+3}], s{sB} offen{o} sc1")
        a(f"s_cmp_lg_u32 s{sLW}, 0")
        a("s_cbranch_scc1 L_nog")
        a("s_mov_b32 exec_hi, 0")
        a(f"v_lshlrev_b32 v{Fb+4}, 3, v0")
        a(f"v_add_u32 v{Fb+4}, 2048, v{Fb+4}")
        self.gather(Fb + 4, ACC, ACC + 18)
        a("s_mov_b64 exec, -1")
        a("s_waitcnt lgkmcnt(0)")
        a("L_nog:")
        a(f"""
        v_lshlrev_b32 v{vAd}, 7, v1
        v_lshl_add_u32 v{vAd}, v{Fb+1}, 4, v{vAd}
        v_add_u32 v{vAd}, {FE}, v{vAd}
        v_lshl_add_u32 v1, v1, 3, v{vO}
        s_barrier
        s_waitcnt vmcnt(0)
        s_barrier
        """)
        self.stamp(3)
        def rd(c):
            b = Fb + 8 * (c & 1)
            a(f"ds_read_b128 {vr(b,4)}, v{vAd} offset:{1024 * c}")
            if c < 4: a(f"ds_read_b128 {vr(b+4,4)}, v{vAd} offset:{1024 * c + 512}")
        rd(0); rd(1)
        for c in range(5):
            b = Fb + 8 * (c & 1); nv = 8 if c < 4 else 4
            a(f"s_waitcnt lgkmcnt({0 if c == 4 else (1 if c == 3 else 2)})")
            ge = GEr + 8 * c
            for h in range(0, nv, 2): a(f"v_pk_add_f32 {vr(ge+h,2)}, {vr(ge+h,2)}, {vr(b+h,2)}")
            if c + 2 <= 4: rd(c + 2)
            for h in range(nv): a(f"v_exp_f32 v{ge+h}, v{ge+h}")
            for h in range(0, nv, 2): a(f"v_pk_add_f32 {vr(ge+h,2)}, {vr(ge+h,2)}, 1.0 op_sel_hi:[1,0]")
            for h in range(nv): a(f"v_rcp_f32 v{ge+h}, v{ge+h}")
            for h in range(0, nv, 2): a(f"v_pk_fma_f32 {vr(ge+h,2)}, {vr(ge+h,2)}, -2.0, 1.0 op_sel_hi:[1,0,0]")
            for h in range(0, nv, 2): a(f"v_cvt_pk_bf16_f32 v{ge+h//2}, v{ge+h}, v{ge+h+1}")
            for t in range(9):
                cc = "0" if c == 0 else vr(ACC + 4 * t, 4)
                if c < 4: a(f"v_mfma_f32_16x16x32_bf16 {vr(ACC+4*t,4)}, {vr(WO+36*c+4*t,4)}, {vr(ge,4)}, {cc}")
                else: a(f"v_mfma_f32_16x16x16_bf16 {vr(ACC+4*t,4)}, {vr(WO+144+2*t,2)}, {vr(ge,2)}, {cc}")
        for cp in range(4):
            s = ACC + 8 * cp; d = Fb + 4 * cp
            for h in range(4): a(f"v_cvt_pk_bf16_f32 v{d+h}, v{s+2*h}, v{s+2*h+1}")
            o = f" offset:{64 * cp}" if cp else ""
            a(f"buffer_store_dwordx4 {vr(d,4)}, v1, s[{SOUT}:{SOUT+3}], 0 offen{o}")
        s = ACC + 32
        for h in range(2): a(f"v_cvt_pk_bf16_f32 v{GEr+h}, v{s+2*h}, v{s+2*h+1}")
        a(f"buffer_store_dwordx2 {vr(GEr,2)}, v{vO}, s[{SOUT}:{SOUT+3}], 0 offen offset:256")
        if self.dev:
            a("s_waitcnt vmcnt(0)"); self.stamp(4); self.dump()
        a("s_endpgm")

    def dump(self):
        a = self.a
        a(f"s_lshl_b32 s{sT0}, s2, 3\ns_add_u32 s{sT0}, s{sT0}, s{sWAVE}\ns_lshl_b32 s{sT0}, s{sT0}, 8\ns_add_u32 s{sT0}, s{sT0}, {STAMP_OFF}")
        if not self.isC:
            for i in range(36): a(f"v_writelane_b32 v255, s{64+i}, {i}")
        a(f"v_writelane_b32 v255, s{sGRP}, 62\nv_writelane_b32 v255, s{sROLE}, 63")
        a(f"v_lshlrev_b32 v1, 2, v0\nbuffer_store_dword v255, v1, s[{SWS}:{SWS+3}], s{sT0} offen")

    def afrags(self, dst, vad, vad8, base):
        a = self.a
        for c in range(5):
            for t in range(3):
                for h in range(2 if c < 4 else 1):
                    ro = base + (32 * c + 16 * h) * 288
                    d = dst + 12 * c + 4 * t + 2 * h if c < 4 else dst + 48 + 2 * t
                    if t < 2: a(f"ds_read_b64_tr_b16 {vr(d,2)}, v{vad} offset:{ro + 32 * t}")
                    else: a(f"ds_read_b64_tr_b16 {vr(d,2)}, v{vad8} offset:{ro + 256}")

    def smallgemm(self, acc, A, B):
        a = self.a
        for c in range(5):
            for t in range(3):
                cc = "0" if c == 0 else vr(acc + 4 * t, 4)
                if c < 4: a(f"v_mfma_f32_16x16x32_bf16 {vr(acc+4*t,4)}, {vr(A+12*c+4*t,4)}, {vr(B+4*c,4)}, {cc}")
                else: a(f"v_mfma_f32_16x16x16_bf16 {vr(acc+4*t,4)}, {vr(A+48+2*t,2)}, {vr(B+16,2)}, {cc}")
        a(f"s_mov_b32 s{sC1}, {hx(f2u(K2))}\ns_mov_b32 s{sC1+1}, {hx(f2u(K2))}")
        for h in range(0, 12, 2): a(f"v_pk_mul_f32 {vr(acc+h,2)}, {vr(acc+h,2)}, s[{sC1}:{sC1+1}]")

    def compute(self):
        a = self.a; self.isC = True
        aE = [2, 3, 4, 5]; aO = [6, 7, 8, 9]; cst = [10, 11, 12, 13]; aW = 14; l8 = 15
        ACC = 16; W = 32; X = 96
        vJ, vG = 172, 173
        vT8, vTw = 174, 175
        a("L_cw:")
        a(f"""
        v_and_b32 v{vJ}, 15, v0
        v_lshrrev_b32 v{vG}, 4, v0
        v_lshrrev_b32 v{vT8}, 2, v0
        v_mul_u32_u24 v{vT8}, 288, v{vT8}
        v_and_b32 v1, 3, v0
        v_lshl_add_u32 v{vT8}, v1, 3, v{vT8}
        s_lshl_b32 s{sT0}, s{sLW}, 6
        v_add_u32 v{vTw}, s{sT0}, v{vT8}
        s_cmp_gt_u32 s{sROLE}, 8
        s_cbranch_scc1 L_chelp
        v_lshlrev_b32 v{l8}, 3, v0
        v_mul_u32_u24 v{cst[0]}, 1056, v{vJ}
        v_lshl_add_u32 v{cst[0]}, v{vG}, 4, v{cst[0]}
        s_lshl_b32 s{sT0}, s{sLW}, 8
        v_add_u32 v{cst[0]}, s{sT0}, v{cst[0]}
        """)
        for c in (1, 2, 3):
            a(f"s_cmp_ge_u32 s{sLW}, {4 - c}\ns_cselect_b32 s{sT0}, 32, 0\nv_add_u32 v{cst[c]}, s{sT0}, v{cst[0]}")
        for r in range(1, 9):
            a(f"s_mov_b32 s{sTAB+r}, {EVEN[r]}\ns_mov_b32 s{sTAB+9+r}, {ODD[r]}\ns_mov_b32 s{sTAB+18+r}, {WSLOT[r%3]}")
        for c in range(4):
            a(f"v_add_u32 v{aE[c]}, {EVEN[0]}, v{cst[c]}\nv_add_u32 v{aO[c]}, {ODD[0]}, v{cst[c]}")
        a(f"v_add_u32 v{aW}, {WSLOT[0]}, v{l8}")
        for i in range(16): a(f"v_mov_b32 v{ACC+i}, 0")
        a(f"s_mov_b32 s{sR}, 0")
        def rdX(u):
            d = u >> 1; cl = (d >> 1) & 3
            off = 128 * d + (32 if d >= 8 else 0)
            return f"ds_read_b128 {vr(X+4*u,4)}, v{(aO if u & 1 else aE)[cl]} offset:{off}"
        def rdW(m, h): return f"ds_read_b64_tr_b16 {vr(W+4*m+2*h,2)}, v{aW} offset:{1024*m+512*h}"
        def Gm(m): return [rdW(m, 0), rdW(m, 1), rdX(m + 3)]
        first = [rdX(0), rdX(1), rdX(2)] + Gm(0) + Gm(1) + Gm(2) + Gm(3)
        def mf(m, i): return f"v_mfma_f32_16x16x32_bf16 {vr(ACC+4*i,4)}, {vr(W+4*m,4)}, {vr(X+4*(m+i),4)}, {vr(ACC+4*i,4)}"
        def inter(mfs, fill):
            n = len(mfs); k = 0
            for i, x in enumerate(mfs):
                a(x)
                upto = (len(fill) * (i + 1) + n - 1) // n
                while k < upto: a(fill[k]); k += 1
        a("s_waitcnt lgkmcnt(0)")
        self.stamp(0)
        a("s_barrier")
        self.stamp(1, 8)
        for x in first: a(x)
        a("L_c1:")
        for m in range(13):
            a("s_waitcnt lgkmcnt(9)")
            if m < 12: fill = Gm(m + 4)
            else:
                fill = [f"v_add_u32 v{aW}, s{sC}, v{l8}"]
                for c in range(4): fill += [f"v_add_u32 v{aE[c]}, s{sA}, v{cst[c]}", f"v_add_u32 v{aO[c]}, s{sB}, v{cst[c]}"]
            if m == 10: fill = fill + [f"s_add_u32 s{sR}, s{sR}, 1", f"s_min_u32 m0, s{sR}, 8"]
            if m == 11: fill = fill + [f"s_movrels_b32 s{sA}, s{sTAB}", f"s_movrels_b32 s{sB}, s{sTAB+9}", f"s_movrels_b32 s{sC}, s{sTAB+18}"]
            inter([mf(m, i) for i in range(4)], fill)
        if self.dev: a(f"s_add_u32 s{sT0}, s{sR}, 10")
        a(f"s_cmp_eq_u32 s{sR}, 9")
        a("s_waitcnt lgkmcnt(0)"); self.stamp(f"s{sT0}"); a("s_nop 0" if "nobar" in self.o else "s_barrier")
        a("s_cbranch_scc1 L_c1tail")
        inter([mf(m, i) for m in (13, 14) for i in range(4)], first)
        a(f"s_cmp_gt_u32 s{sR}, 5")
        a("s_cbranch_scc1 L_c1")
        for i in range(4): a(mf(15, i))
        a("s_branch L_c1")
        a("L_c1tail:")
        if self.lite and "cyc" not in self.o: self.stamp(19)
        self.cyc(0)
        if "nobar" in self.o: a("s_barrier")
        W2 = 176
        HE = 200
        vHa, vHe = 216, 217
        vOne = 218
        self.vC1 = 220
        vW2a, vW2b = 222, 223
        TMP = 224
        A2 = 32
        H = 96
        def rdW2(k):
            b = W2 + 12 * (k & 1); o = 9216 * (k % 7)
            return [f"ds_read_b64_tr_b16 {vr(b+4*t+2*h,2)}, v{vW2a if t < 2 else vW2b} offset:{o + 4608*h + (32*t if t < 2 else 256)}"
                    for t in range(3) for h in range(2)]
        pre = [f"v_mov_b32 v{vW2a}, v{vTw}", f"v_mov_b32 v{vW2b}, v{vT8}"] + rdW2(0)
        pre += [f"s_mul_i32 s{sT0}, s{sGRP}, 14", f"s_sub_u32 s{sT0}, s{sT0}, 1", f"v_add_u32 v1, s{sT0}, v{vJ}",
                f"s_movk_i32 s{sT1}, 251", f"s_movk_i32 s{sT2}, 125",
                f"v_cmp_gt_u32 vcc, s{sT1}, v1", f"v_cmp_ne_u32 s[{sEX}:{sEX+1}], s{sT2}, v1",
                f"v_mov_b32 v{vOne}, 0x7f800000", f"s_and_b64 vcc, vcc, s[{sEX}:{sEX+1}]",
                f"v_mov_b32 v{self.vC1}, {hx(f2u(C1))}", f"v_mov_b32 v{self.vC1+1}, {hx(f2u(C1))}",
                f"v_cndmask_b32 v{vOne}, v{vOne}, 1.0, vcc",
                f"s_mov_b32 s{sC2}, {hx(f2u(C2))}", f"s_mov_b32 s{sC2+1}, {hx(f2u(C2))}",
                f"v_mov_b32 v{vOne+1}, v{vOne}"]
        inter([mf(m, i) for m in (13, 14) for i in range(4)], pre)
        a(f"""
        v_lshlrev_b32 v{vHa}, 11, v{vG}
        v_add_u32 v{vHa}, {HB}, v{vHa}
        s_lshl_b32 s{sT0}, s{sLW}, 5
        v_lshl_add_u32 v1, v{vJ}, 7, v{vHa}
        v_add_u32 v1, s{sT0}, v1
        v_mul_u32_u24 v{vHe}, 112, v{vJ}
        v_add_u32 v{vHa}, v{vHe}, v{vHa}
        v_add_u32 v{vHe}, s{sT0}, v{vHa}
        """)
        self.cyc(1)
        for i in range(4):
            self.gelu4(ACC + 4 * i, TMP + 4 * (i & 1), vOne)
            d = TMP + 8 + 4 * (i >> 1) + 2 * (i & 1)
            a(f"v_cvt_pk_bf16_f32 v{d}, v{ACC+4*i}, v{ACC+4*i+1}")
            a(f"v_cvt_pk_bf16_f32 v{d+1}, v{ACC+4*i+2}, v{ACC+4*i+3}")
            if i & 1: a(f"ds_write_b128 v1, {vr(TMP+8+4*(i>>1),4)} offset:{16*(i>>1)}")
        self.cyc(2)
        a("s_waitcnt lgkmcnt(0)")
        self.cyc(3); self.cycflush(40, 4)
        self.stamp(2)
        a("s_barrier")
        def rdH(q): return f"ds_read_b128 {vr(H+4*(q%16),4)}, v{vHa} offset:{16*q}"
        def rdE(q): return f"ds_read_b128 {vr(HE+4*(q%4),4)}, v{vHe} offset:{16*q}"
        for q in range(7): a(rdH(q))
        a(rdE(0)); a(rdE(1))
        for k in range(16):
            b = W2 + 12 * (k & 1)
            mfs = []
            for rho in range(7):
                for t in range(2):
                    d = A2 + 8 * rho + 4 * t
                    mfs.append(f"v_mfma_f32_16x16x32_bf16 {vr(d,4)}, {vr(b+4*t,4)}, {vr(H+4*((rho+k)%16),4)}, {vr(d,4) if k else 0}")
            for e in range(2):
                d = A2 + 56 + 4 * e
                mfs.append(f"v_mfma_f32_16x16x32_bf16 {vr(d,4)}, {vr(b+8,4)}, {vr(HE+4*((e+k)%4),4)}, {vr(d,4) if k else 0}")
            fill = []
            if k < 15:
                if (k + 1) % 7 == 0: fill += [f"v_add_u32 v{vW2a}, {7*9216}, v{vW2a}", f"v_add_u32 v{vW2b}, {7*9216}, v{vW2b}"]
                fill += rdW2(k + 1) + [rdH(k + 7), rdE(k + 2)]
            a("s_waitcnt lgkmcnt(0)")
            if k in (7, 11): self.stamp(21 if k == 7 else 22); a("s_barrier")
            inter(mfs[:10], fill)
            for x in mfs[10:]: a(x)
        a(f"""
        v_lshrrev_b32 v1, 3, v{vJ}
        v_mul_u32_u24 v1, {9*UNIT}, v1
        v_and_b32 v2, 7, v{vJ}
        v_lshl_add_u32 v2, v{vG}, 3, v2
        v_lshl_add_u32 v3, v2, 3, v1
        v_lshl_add_u32 v2, v2, 4, v1
        s_mul_i32 s{sA}, s{sGRP}, {MB*9}
        s_add_u32 s{sA}, s{sA}, s{sROLE}
        s_mul_i32 s{sA}, s{sA}, {UNIT}
        s_mul_i32 s{sB}, s{sLW}, {4*9*UNIT}
        s_add_u32 s{sB}, s{sB}, s{sA}
        s_add_u32 s{sC}, s{sB}, {2*9*UNIT}
        s_cmp_eq_u32 s{sLW}, 3
        s_cselect_b32 s{sC}, 0x8000000, s{sC}
        s_lshl_b32 s{sT0}, s{sLW}, 9
        s_add_u32 s{sA}, s{sA}, s{sT0}
        """)
        for rho in range(7):
            s = A2 + 8 * rho; d = TMP + 4 * (rho & 3)
            for h in range(4): a(f"v_cvt_pk_bf16_f32 v{d+h}, v{s+2*h}, v{s+2*h+1}")
            if rho: a(f"s_add_u32 s{sA}, s{sA}, {2*9*UNIT}")
            a(f"buffer_store_dwordx4 {vr(d,4)}, v2, s[{SWS}:{SWS+3}], s{sA} offen sc1")
        for e in range(2):
            s = A2 + 56 + 4 * e; d = A2 + 2 * e
            for h in range(2): a(f"v_cvt_pk_bf16_f32 v{d+h}, v{s+2*h}, v{s+2*h+1}")
            a(f"buffer_store_dwordx2 {vr(d,2)}, v3, s[{SWS}:{SWS+3}], s{sB if e == 0 else sC} offen offset:2048 sc1")
        self.stamp(3, 9)
        a("s_branch L_ccommon")
        AF = 32; BF = 96; AC = 16
        a("L_chelp:")
        a(f"s_cmp_lg_u32 s{sROLE}, 9")
        a("s_waitcnt lgkmcnt(0)")
        a("s_cbranch_scc1 L_chelp2")
        a(f"v_mul_u32_u24 v1, 288, v{vJ}\nv_lshl_add_u32 v1, v{vG}, 3, v1")
        for t in range(9): a(f"buffer_load_dwordx2 {vr(BF+2*t,2)}, v1, s[{SG}:{SG+3}], 0 offen offset:{32*t}")
        a(f"v_add_u32 v2, {LWG}, v{vTw}\nv_add_u32 v3, {LWG}, v{vT8}")
        a("s_barrier")
        self.afrags(AF, 2, 3, 0)
        a("s_waitcnt vmcnt(0) lgkmcnt(0)")
        self.smallgemm(AC, AF, BF)
        a(f"""
        v_lshlrev_b32 v1, 4, v0
        s_mul_i32 s{sA}, s{sGRP}, 9216
        s_add_u32 s{sA}, s{sA}, {GE_OFF}
        s_add_u32 s{sB}, s{sA}, 8192
        s_lshl_b32 s{sT0}, s{sLW}, 11
        s_add_u32 s{sA}, s{sA}, s{sT0}
        s_cmp_eq_u32 s{sLW}, 0
        s_cselect_b32 s{sB}, s{sB}, 0x8000000
        buffer_store_dwordx4 {vr(AC,4)}, v1, s[{SWS}:{SWS+3}], s{sA} offen sc1
        buffer_store_dwordx4 {vr(AC+4,4)}, v1, s[{SWS}:{SWS+3}], s{sA} offen offset:1024 sc1
        buffer_store_dwordx4 {vr(AC+8,4)}, v1, s[{SWS}:{SWS+3}], s{sB} offen sc1
        s_branch L_ccommon
        L_chelp2:
        s_lshl_b32 s{sT0}, s{sWAVE}, 4
        s_add_u32 s{sT0}, s{sT0}, s{sROLE}
        s_cmp_lg_u32 s{sT0}, 10
        s_cbranch_scc1 L_nozero
        v_lshrrev_b32 v1, 2, v0
        v_and_b32 v2, 3, v0
        v_lshlrev_b32 v2, 4, v2
        v_lshl_add_u32 v1, v1, 7, v2
        v_mov_b32 v4, 0
        v_mov_b32 v5, 0
        v_mov_b32 v6, 0
        v_mov_b32 v7, 0
        s_mul_i32 s{sT0}, s{sGRP}, {MB*128}
        s_add_u32 s{sT0}, s{sT0}, {FLAG_OFF}
        s_mov_b32 exec_hi, 0xffffff
        buffer_store_dwordx4 v[4:7], v1, s[{SWS}:{SWS+3}], s{sT0} offen sc1
        s_lshl_b32 s{sT0}, s{sGRP}, 2
        v_mov_b32 v2, 1
        s_mov_b64 exec, 1
        s_waitcnt vmcnt(0)
        buffer_store_dword v2, off, s[{SDBG}:{SDBG+3}], s{sT0} sc1
        s_mov_b64 exec, -1
        L_nozero:
        s_barrier
        L_ccommon:
        s_mul_i32 s{sD}, s{sGRP}, {MB*128}
        s_add_u32 s{sD}, s{sD}, {FLAG_OFF}
        s_lshl_b32 s{sT0}, s{sROLE}, 2
        v_lshl_add_u32 v7, v0, 7, s{sT0}
        v_mov_b32 v8, 1
        s_waitcnt vmcnt(0)
        """)
        self.stamp(4)
        a("s_barrier")
        a(f"""
        s_cmp_lg_u32 s{sWAVE}, 0
        s_cbranch_scc1 L_noadd
        s_cmp_gt_u32 s{sROLE}, 9
        s_cbranch_scc1 L_noadd
        s_mov_b64 exec, 0x3fff
        buffer_store_dword v8, v7, s[{SWS}:{SWS+3}], s{sD} offen sc1
        s_mov_b64 exec, -1
        L_noadd:
        """)
        self.afrags(AF, vTw, vT8, LWF)
        a(f"""
        s_lshl_b32 s{sT0}, s{sLW}, 9
        v_lshlrev_b32 v4, 3, v0
        v_add_u32 v4, s{sT0}, v4
        v_and_b32 v2, 7, v{vJ}
        v_lshl_add_u32 v2, v{vG}, 3, v2
        v_lshlrev_b32 v3, 3, v2
        v_lshlrev_b32 v2, 4, v2
        v_add_u32 v3, {FB+2048}, v3
        v_add_u32 v5, {FE}, v2
        s_lshl_b32 s{sT0}, s{sLW}, 10
        v_add_u32 v6, s{sT0}, v5
        v_add_u32 v2, {FB}, v2
        s_cmp_lg_u32 s{sWAVE}, 1
        s_cbranch_scc1 L_nopoll
        s_lshl_b32 s{sT0}, s{sROLE}, 7
        s_add_u32 s{sT0}, s{sT0}, s{sD}
        s_mov_b32 s{sT1}, 0
        v_lshlrev_b32 v7, 2, v0
        s_mov_b64 exec, 0x3ff
        L_poll:
        buffer_load_dword v1, v7, s[{SWS}:{SWS+3}], s{sT0} offen sc1
        s_add_u32 s{sT1}, s{sT1}, 1
        s_waitcnt vmcnt(0)
        v_cmp_ne_u32 vcc, 1, v1
        s_cbranch_vccz L_polld
        s_cmp_lt_u32 s{sT1}, 0x40000
        s_cbranch_scc1 L_poll
        L_polld:
        s_mov_b64 exec, -1
        L_nopoll:
        s_waitcnt lgkmcnt(0)
        """)
        self.stamp(5)
        a("s_barrier")
        self.vC1 = 220
        self.cyc(0)
        self.gather(4, BF, BF + 20)
        a("s_waitcnt lgkmcnt(0)")
        self.cyc(3); self.cycflush(50, 4)
        self.stamp(6)
        self.cyc(0)
        a("s_barrier")
        self.cyc(1)
        for c in range(4): a(f"ds_read_b128 {vr(BF+4*c,4)}, v2 offset:{512*c}")
        a(f"ds_read_b64 {vr(BF+16,2)}, v3")
        a("s_waitcnt lgkmcnt(0)")
        self.cyc(2)
        self.smallgemm(AC, AF, BF)
        self.cyc(3)
        a(f"ds_write_b128 v6, {vr(AC,4)}")
        a(f"ds_write_b128 v6, {vr(AC+4,4)} offset:512")
        a(f"ds_write_b128 v5, {vr(AC+8,4)} offset:4096")
        a("s_waitcnt lgkmcnt(0)")
        self.cycflush(44, 4); self.cyc(0); self.cycflush(48, 1)
        self.stamp(7)
        a("s_barrier")
        if self.dev: self.dump()
        a("L_end:")
        a("s_endpgm")

    def build(self):
        self.prologue(); self.loader(); self.compute()
        body = self.a.finish()
        ref = open(f"cdna_kernels/{NAME}.s.ref").read().split('\n')
        head = [l for l in ref if l.startswith(';') and '@launch' not in l]
        out = '\n'.join(head) + f"\n; @launch grid=({NWG},1,1) block=(512,1,1) lds=163840\n"
        out += f""".amdgcn_target "amdgcn-amd-amdhsa--gfx950"
.text
.globl {NAME}_kernel
.p2align 8
.type {NAME}_kernel,@function
{NAME}_kernel:
{body}.section .rodata,"a"
.p2align 6
.amdhsa_kernel {NAME}_kernel
  .amdhsa_next_free_vgpr 256
  .amdhsa_next_free_sgpr 102
  .amdhsa_accum_offset 256
  .amdhsa_group_segment_fixed_size 0
  .amdhsa_kernarg_size 80
  .amdhsa_user_sgpr_count 2
  .amdhsa_user_sgpr_kernarg_segment_ptr 1
  .amdhsa_system_sgpr_workgroup_id_x 1
.end_amdhsa_kernel
"""
        return out

if __name__ == "__main__":
    dev = "dev" in sys.argv[2:]
    open(sys.argv[1], "w").write(Gen(dev, sys.argv[2:]).build())

def check_ws(ws, fpre, ge, bf):
    import numpy as np
    p = bf(ws[:GE_OFF].view(np.uint16)).reshape(G, MB, 9, UNIT // 2)
    s = p.sum(axis=2)
    main = s[:, :, :1024].reshape(G, MB, 4, 4, 8, 2, 4)
    full = np.zeros((G, MB, 8, 144), np.float32)
    for w in range(4):
        for gg in range(4):
            for hf in range(2):
                full[:, :, :, 32*w + 16*hf + 4*gg: 32*w + 16*hf + 4*gg + 4] = main[:, :, w, gg, :, hf, :]
    ex = s[:, :, 1024:].reshape(G, MB, 4, 8, 4)
    for gg in range(4): full[:, :, :, 128 + 4*gg:132 + 4*gg] = ex[:, :, gg]
    worst = []
    for grp in range(G):
        m = 0
        for u in range(MB):
            for row in range(8):
                Fv = R*grp + (u >> 1) + 7*(8*(u & 1) + row)
                if Fv < 1000: r = fpre[0, Fv]
                elif 1008 <= Fv < 2008: r = fpre[1, Fv - 1008]
                else: continue
                d = np.abs(full[grp, u, row] - r)
                m = max(m, np.inf if np.isnan(d).any() else d.max())
        worst.append(round(float(m), 4))
    print("fpre err per group", worst, "scale", np.abs(fpre).mean())
    gw = ws[GE_OFF:GE_OFF + G*9216].view(np.float32).reshape(G, 9, 4, 16, 4)
    gr = (ge.reshape(16, 9, 4, 4) * K2).transpose(1, 2, 0, 3)
    print("ge err", np.abs(gw - gr[None]).max())
```

```python
import sys, struct
from asmlib import Asm, vr, sr

NAME = "standalone__seq2seq_rnn_t_joint__speech"
def f2u(x): return struct.unpack('<I', struct.pack('<f', x))[0]
def hx(x): return hex(x & 0xffffffff)

R = 112; G = 18; MB = 14; NWG = G * MB
XBYTES = 2304000; WBYTES = 1285632; GBYTES = 4608; MBYTES = 41472; OBYTES = 4608000
UNIT = 2304
GE_OFF = NWG * 9 * UNIT
FLAG_OFF = GE_OFF + G * 9216
STAMP_OFF = FLAG_OFF + NWG * 128
WS_USED = STAMP_OFF + NWG * 8 * 256
OOB = 0x80000000
XS = 17952; WSL = 16384
HB = 163840 - 8192
XL4 = HB - XS; W2s = XL4 - WSL; X3 = W2s - XS; W1s = X3 - WSL; X2 = W1s - XS
W0s = X2 - WSL; X1 = W0s - XS; X0 = X1 - XS
assert X0 >= 0 and X0 % 32 == 0
XSL = [X0, X1, X2, X3]; WSLOT = [W0s, W1s, W2s]
assert X2 >= 4 * 9216 and X3 >= 8 * 9216 and HB >= 16 * 9216
LWF = 0; LWO = 41472; LWG = 82944; FB = 126976; FE = 131072
EVEN = [X0, X0 + 64, X2, X2 + 64, X0, X0 + 64, X2, X2 + 64, XL4]
ODD = [XL4 + 64, X1, X1 + 64, X3, X3 + 64, X1, X1 + 64, X3, X3 + 64]
ITEM = [0, 5, 1, 6, 2, 7, 3, 8]
ROLE = [0, 1, 9, 2, 3, 10, 4, 5, 11, 6, 7, 12, 8, 13]
C1 = -2.3022082; C2 = -0.10294324; K2 = 2.8853900817779268

SX, SW1, SW2, SG, SWF, SWG, SWO, SOUT, SDBG, SWS = 4, 8, 12, 16, 20, 24, 28, 32, 36, 40
sGRP, sROLE, sWAVE, sLW = 44, 45, 46, 47
sT0, sT1, sT2, sT3 = 48, 49, 50, 51
sA, sB, sC, sD = 52, 53, 54, 55
sEX = 56
sC1, sC2 = 58, 60
sR = 62
sK2 = 63
sTAB = 64
sST = 100

class Gen:
    def __init__(self, dev=False, opts=()):
        self.a = Asm(); self.dev = dev; self.nst = 0; self.o = set(opts); self.lite = "lite" in self.o

    def stamp(self, idx, clk=None):
        if not self.dev: return
        if self.lite and (isinstance(idx, str) or 11 <= idx <= 18 or 20 <= idx <= 31): return
        a = self.a
        for op, ix in (("s_memrealtime", idx), ("s_memtime", clk)):
            if ix is None: continue
            a(f"{op} s[{sST}:{sST+1}]")
            a("s_waitcnt lgkmcnt(0)")
            if idx == 0: a("s_mov_b32 s3, s98")
            if self.isC:
                if isinstance(ix, str):
                    a(f"s_mov_b32 m0, {ix}"); ix = "m0"
                a(f"v_writelane_b32 v255, s{sST}, {ix}")
            else: a(f"s_mov_b32 s{64+ix}, s{sST}")

    def cyc(self, k):
        if self.dev and "cyc" in self.o: self.a(f"s_memtime s[{92+2*k}:{93+2*k}]")
    def cycflush(self, base, n):
        if self.dev and "cyc" in self.o:
            self.a("s_waitcnt lgkmcnt(0)")
            for k in range(n): self.a(f"v_writelane_b32 v255, s{92+2*k}, {base+k}")

    def srd(self, s, off, nbytes):
        a = self.a
        a(f"s_load_dwordx2 s[{s}:{s+1}], s[0:1], {off}")
        a(f"s_mov_b32 s{s+2}, {nbytes}")
        a(f"s_mov_b32 s{s+3}, 0x20000")

    def prologue(self):
        a = self.a
        if self.dev: a("s_memrealtime s[98:99]")
        a(f"s_cmp_ge_u32 s2, {NWG}")
        a("s_cbranch_scc1 L_end")
        for s, off, n in ((SX, 0, XBYTES), (SW1, 8, WBYTES), (SW2, 16, WBYTES), (SG, 24, GBYTES), (SWF, 32, MBYTES),
                          (SWG, 40, MBYTES), (SWO, 48, MBYTES), (SOUT, 56, OBYTES), (SDBG, 64, 256), (SWS, 72, WS_USED)):
            self.srd(s, off, n)
        a(f"""
        v_lshrrev_b32 v1, 6, v0
        v_and_b32 v0, 63, v0
        s_and_b32 s{sT0}, s2, 7
        v_readfirstlane_b32 s{sWAVE}, v1
        s_lshr_b32 s{sT1}, s2, 3
        s_sub_i32 s{sT2}, s{sT0}, 4
        s_max_i32 s{sT2}, s{sT2}, 0
        s_lshl_b32 s{sT0}, s{sT0}, 5
        s_sub_u32 s{sT0}, s{sT0}, s{sT2}
        s_add_u32 s{sT0}, s{sT0}, s{sT1}
        s_mul_i32 s{sGRP}, s{sT0}, 4682
        s_lshr_b32 s{sGRP}, s{sGRP}, 16
        s_mul_i32 s{sT1}, s{sGRP}, {MB}
        s_sub_u32 s{sT0}, s{sT0}, s{sT1}
        s_lshl_b32 s{sT0}, s{sT0}, 2
        """)
        for L in range(NWG): assert (L * 4682) >> 16 == L // MB
        tab = sum(r << (4 * i) for i, r in enumerate(ROLE))
        a(f"""
        s_mov_b32 s{sT2}, {hx(tab)}
        s_mov_b32 s{sT3}, {hx(tab >> 32)}
        s_lshr_b64 s[{sT2}:{sT3}], s[{sT2}:{sT3}], s{sT0}
        s_and_b32 s{sROLE}, s{sT2}, 15
        s_and_b32 s{sLW}, s{sWAVE}, 3
        s_cmp_lt_u32 s{sWAVE}, 4
        s_cbranch_scc1 L_cw
        """)

    def dma(self, v, srd, soff, off=0):
        o = f" offset:{off}" if off else ""
        self.a(f"buffer_load_dwordx4 v{v}, s[{srd}:{srd+3}], {soff} offen{o} lds")

    def load_mat(self, srd, lds, vM):
        a = self.a
        for i in range(11):
            if i % 4 == 0:
                a(f"s_add_u32 m0, s{sA}, {lds + 1024 * i}")
                a(f"s_mov_b32 s{sT0}, {1024 * i}")
            if i == 10: a("s_mov_b64 exec, 0xff")
            self.dma(vM, srd, f"s{sT0}", 1024 * (i % 4))
        a("s_mov_b64 exec, -1")

    def loader(self):
        a = self.a; self.isC = False
        vW, vW0, vT, vU, vN = 2, 3, 4, 5, 6
        fA = [8 + q for q in range(5)]; fB = [13 + q for q in range(5)]
        vA1, vA0, vM1, vM0, vMat = 18, 19, 20, 21, 22
        a(f"""
        v_lshlrev_b32 v{vMat}, 4, v0
        s_mul_i32 s{sA}, s{sLW}, 10368
        v_add_u32 v{vMat}, s{sA}, v{vMat}
        s_cmp_gt_u32 s{sROLE}, 8
        s_cbranch_scc1 L_lhelp
        """)
        a(f"""
        v_and_b32 v{vT}, 24, v0
        v_lshrrev_b32 v{vU}, 5, v0
        v_lshl_add_u32 v{vT}, v{vU}, 2, v{vT}
        v_bfe_u32 v{vU}, v0, 1, 2
        v_add_u32 v{vT}, v{vT}, v{vU}
        v_mul_u32_u24 v{vW}, 288, v{vT}
        v_and_b32 v{vU}, 1, v0
        v_lshl_add_u32 v{vW}, v{vU}, 4, v{vW}
        s_mul_i32 s{sT0}, s{sLW}, 82944
        s_lshl_b32 s{sT1}, s{sROLE}, 5
        s_add_u32 s{sT0}, s{sT0}, s{sT1}
        v_add_u32 v{vW}, s{sT0}, v{vW}
        v_subrev_u32 v{vW0}, 4608, v{vW}
        v_bfrev_b32 v1, 1
        v_cmp_gt_i32 vcc, 0, v{vW0}
        v_cndmask_b32 v{vW0}, v{vW0}, v1, vcc
        """)
        a(f"""
        s_mul_i32 s{sT0}, s{sGRP}, {R}
        s_sub_u32 s{sT0}, s{sT0}, 12
        v_lshrrev_b32 v{vU}, 3, v0
        v_add_u32 v{vU}, s{sT0}, v{vU}
        v_and_b32 v{vT}, 7, v0
        v_lshlrev_b32 v{vT}, 4, v{vT}
        s_lshl_b32 s{sT1}, s{sLW}, 3
        s_movk_i32 s{sB}, 1152
        s_movk_i32 s{sC}, 999
        """)
        def faddr(dst, q, plus):
            if q < 4:
                a(f"s_add_u32 s{sT2}, s{sT1}, {32 * q + plus}")
                a(f"v_add_u32 v{vN}, s{sT2}, v{vU}")
            else:
                a(f"v_add_u32 v{vN}, {128 + plus}, v{vU}")
            a(f"""
            v_cmp_lt_i32 vcc, s{sC}, v{vN}
            v_add_u32 v7, -8, v{vN}
            v_cndmask_b32 v7, v{vN}, v7, vcc
            v_cmp_lt_u32 s[{sEX}:{sEX+1}], s{sC}, v7
            v_mad_u32_u24 v{dst}, v7, s{sB}, v{vT}
            s_xor_b64 vcc, vcc, s[{sEX}:{sEX+1}]
            v_cndmask_b32 v{dst}, v{dst}, v1, vcc
            """)
        for q in range(5): faddr(fA[q], q, 0)
        a(f"""
        s_lshl_b32 s{sD}, s{sLW}, 4
        s_mul_i32 s{sT3}, s{sLW}, 1056
        s_lshl_b32 s{sR}, s{sLW}, 10
        s_waitcnt lgkmcnt(0)
        """)
        sX17 = sC1
        a(f"s_mov_b64 s[{sX17}:{sX17+1}], 0xffff")
        a(f"s_lshl_b64 s[{sX17}:{sX17+1}], s[{sX17}:{sX17+1}], s{sD}")
        sLX, sLWk = sC2, sR
        a(f"s_mov_b32 s{sLX}, s{sT3}")
        def xitem(l, slot):
            regs = fA if l <= 6 else fB
            a(f"s_movk_i32 s{sT0}, {256 + 128 * l if l <= 6 else 128 * (l - 7)}")
            for q in range(4):
                a(f"s_add_u32 m0, s{sLX}, {slot + 1056 * 4 * q}")
                self.dma(regs[q], SX, f"s{sT0}")
            a(f"s_mov_b32 m0, {slot + 1056 * 16}")
            a(f"s_mov_b64 exec, s[{sX17}:{sX17+1}]")
            self.dma(regs[4], SX, f"s{sT0}")
            a("s_mov_b64 exec, -1")
        def wstep(r):
            for q in range(4):
                a(f"s_add_u32 m0, s{sLWk}, {WSLOT[r % 3] + 4096 * q}")
                if q == 0 and r == 0:
                    self.dma(vW0, SW1, "0")
                else:
                    a(f"s_mov_b32 s{sT0}, {331776 * q + 9216 * r - 4608}")
                    self.dma(vW, SW1, f"s{sT0}")
        def step(r):
            if r < 8: xitem(ITEM[r], XSL[r % 4])
            if r == 0: xitem(4, XL4)
            wstep(r)
        self.stamp(0)
        step(0); step(1); self.stamp(25)
        a(f"s_lshl_b32 s{sT1}, s{sLW}, 3")
        for q in range(5): faddr(fB[q], q, 1)
        a(f"""
        s_mul_i32 s{sT0}, s{sROLE}, 4608
        s_mul_i32 s{sT1}, s{sLW}, 82944
        s_add_u32 s{sT0}, s{sT0}, s{sT1}
        v_lshlrev_b32 v{vA1}, 4, v0
        v_add_u32 v{vA1}, s{sT0}, v{vA1}
        v_lshrrev_b32 v{vT}, 5, v0
        v_mul_u32_u24 v{vT}, {41472 - 4608}, v{vT}
        v_add_u32 v{vM1}, 4096, v{vA1}
        v_add_u32 v{vM1}, v{vT}, v{vM1}
        v_subrev_u32 v{vA0}, 41472, v{vA1}
        v_subrev_u32 v{vM0}, 41472, v{vM1}
        s_cmp_eq_u32 s{sLW}, 0
        s_cselect_b64 vcc, -1, 0
        v_cndmask_b32 v{vA0}, v{vA0}, v1, vcc
        s_mov_b32 vcc_hi, 0
        v_cndmask_b32 v{vM0}, v{vM0}, v1, vcc
        s_mul_i32 s{sB}, s{sLW}, 9216
        """)
        def w2grp(g):
            if g: a(f"s_mov_b32 s{sT0}, {g * 331776 - 41472}")
            so = f"s{sT0}" if g else "0"
            a(f"s_add_u32 m0, s{sB}, {36864 * g}")
            for i in range(4): self.dma(vA1 if g else vA0, SW2, so, 1024 * i)
            a(f"s_add_u32 m0, s{sB}, {36864 * g + 4096}")
            self.dma(vM1 if g else vM0, SW2, so)
            a(f"s_add_u32 m0, s{sB}, {36864 * g + 5120}")
            a(f"s_mov_b32 s{sT0}, {g * 331776 + 512}")
            for i in range(4): self.dma(vA1, SW2, f"s{sT0}", 1024 * i)
        a("s_waitcnt vmcnt(9)"); self.stamp(1); a("s_barrier")
        step(2)
        bar = "s_nop 0" if "nobar" in self.o else "s_barrier"
        for r in range(1, 7):
            a("s_waitcnt vmcnt(9)"); self.stamp(10 + r); a(bar)
            if "nodma" not in self.o: step(r + 2)
            self.stamp(25 + r)
        a("s_waitcnt vmcnt(4)"); self.stamp(17); a(bar)
        if "nobar" in self.o: a("s_waitcnt vmcnt(0)"); self.stamp(10)
        w2grp(0)
        a("s_waitcnt vmcnt(9)"); self.stamp(18); a(bar)
        w2grp(1)
        a("s_waitcnt vmcnt(9)"); self.stamp(19); a("s_barrier")
        a("s_waitcnt vmcnt(0)"); self.stamp(20); a("s_barrier")
        w2grp(2); w2grp(3)
        a("s_waitcnt vmcnt(9)"); self.stamp(21); a("s_barrier")
        self.load_mat(SWF, LWF, vMat)
        a("s_waitcnt vmcnt(11)"); self.stamp(22); a("s_barrier")
        self.load_mat(SWO, LWO, vMat)
        a("s_branch L_lcommon")
        a("L_lhelp:")
        self.prefetch()
        a(f"s_cmp_lg_u32 s{sROLE}, 9")
        a("s_cbranch_scc1 L_lhelp2")
        self.load_mat(SWG, LWG, vMat)
        a("L_lhelp2:")
        a("s_waitcnt vmcnt(0)\ns_barrier")
        if "nohw" not in self.o:
            self.load_mat(SWF, LWF, vMat)
            self.load_mat(SWO, LWO, vMat)
        a("L_lcommon:")
        a(f"""
        s_cmp_lg_u32 s{sLW}, 0
        s_cbranch_scc1 L_nochk
        s_lshl_b32 s{sT0}, s{sGRP}, 2
        s_mov_b32 s{sT1}, 0
        L_chk:
        buffer_load_dword v1, off, s[{SDBG}:{SDBG+3}], s{sT0} sc1
        s_add_u32 s{sT1}, s{sT1}, 1
        s_waitcnt vmcnt(0)
        v_readfirstlane_b32 s{sT2}, v1
        s_cmp_lg_u32 s{sT2}, 0
        s_cbranch_scc1 L_nochk
        s_cmp_lt_u32 s{sT1}, 0x40000
        s_cbranch_scc1 L_chk
        L_nochk:
        """)
        a("s_waitcnt vmcnt(0)"); self.stamp(2); a("s_barrier")
        self.loader_p2()

    def prefetch(self):
        a = self.a
        sX, sCU = sB, sC
        a(f"""
        s_and_b32 s{sX}, s2, 7
        s_mul_i32 s{sCU}, s{sGRP}, 5
        s_add_u32 s{sCU}, s{sCU}, s{sROLE}
        s_mul_i32 s{sT0}, s{sX}, 11
        s_cmp_gt_u32 s{sX}, 2
        s_addc_u32 s{sT0}, s{sT0}, 9
        s_sub_u32 s{sCU}, s{sCU}, s{sT0}
        v_bfrev_b32 v1, 1
        s_cmp_gt_u32 s{sCU}, 10
        s_cselect_b32 s{sT0}, 3, s{sLW}
        s_cmp_eq_u32 s{sT0}, 3
        s_waitcnt lgkmcnt(0)
        s_cbranch_scc1 L_pfd
        """)
        if "nopf" in self.o: a("s_branch L_pfd")
        self.stamp(0)
        a(f"""
        s_cmp_eq_u32 s{sLW}, 2
        s_cbranch_scc1 L_pfx
        s_mul_i32 s{sT0}, s{sCU}, 105
        s_lshl_b32 s{sT1}, s{sLW}, 6
        v_add_u32 v3, s{sT1}, v0
        v_add_u32 v2, s{sT0}, v3
        v_mul_u32_u24 v4, 911, v2
        v_lshrrev_b32 v4, 16, v4
        v_mul_u32_u24 v4, {82944 - 72 * 128}, v4
        v_lshl_add_u32 v2, v2, 7, v4
        v_cmp_gt_u32 vcc, 105, v3
        v_cndmask_b32 v2, v1, v2, vcc
        v_subrev_u32 v3, 4608, v2
        buffer_load_dword v5, v3, s[{SW1}:{SW1+3}], 0 offen
        """)
        pw = [int(x[2:]) for x in self.o if x.startswith("pw")]
        pw = pw[0] if pw else 99
        for r in range(1, 9):
            a(f"s_mov_b32 s{sT0}, {9216 * r - 4608}")
            if r >= pw: a(f"s_waitcnt vmcnt({pw - 1})")
            a(f"buffer_load_dword v5, v2, s[{SW1}:{SW1+3}], s{sT0} offen")
        a(f"""
        s_branch L_pfw2
        L_pfx:
        s_mul_i32 s{sT0}, s{sX}, 9
        s_lshr_b32 s{sT0}, s{sT0}, 2
        s_mul_i32 s{sT0}, s{sT0}, {R}
        s_cmp_gt_u32 s{sX}, 3
        s_cselect_b32 s{sT1}, 20, 12
        s_sub_u32 s{sT0}, s{sT0}, s{sT1}
        s_cmp_eq_u32 s{sX}, 3
        s_cselect_b32 s{sT1}, 43, 33
        s_mul_i32 s{sT2}, s{sT1}, s{sCU}
        s_add_u32 s{sT0}, s{sT0}, s{sT2}
        s_mul_i32 s{sT0}, s{sT0}, 1152
        v_mul_u32_u24 v2, 1152, v0
        v_add_u32 v2, s{sT0}, v2
        v_cmp_gt_u32 vcc, s{sT1}, v0
        v_cndmask_b32 v2, v1, v2, vcc
        """)
        for n, l in enumerate((0, 4, 5, 1, 6, 2, 7, 3, 8)):
            if n > pw: a(f"s_waitcnt vmcnt({pw - 1})")
            a(f"buffer_load_dword v5, v2, s[{SX}:{SX+3}], 0 offen offset:{256 + 128 * l}")
        a(f"""
        L_pfw2:
        s_mul_i32 s{sT0}, s{sLW}, 11
        s_add_u32 s{sT0}, s{sT0}, s{sCU}
        s_lshl_b32 s{sT0}, s{sT0}, 13
        v_lshlrev_b32 v2, 7, v0
        """)
        self.stamp(5)
        if self.dev and not self.lite: a("s_waitcnt vmcnt(8)"); self.stamp(6); a("s_waitcnt vmcnt(0)"); self.stamp(7)
        for i in range(0 if "nop2" in self.o else 5):
            if i: a(f"s_add_u32 s{sT0}, s{sT0}, {33 * 8192}")
            if pw < 9: a(f"s_waitcnt vmcnt({pw - 1})")
            a(f"buffer_load_dword v5, v2, s[{SW2}:{SW2+3}], s{sT0} offen")
        self.stamp(8)
        if self.dev: a("s_waitcnt vmcnt(0)"); self.stamp(9)
        a("L_pfd:")

    def gelu4(self, x, t, one):
        a = self.a
        o = vr(one, 2) if one is not None else "1.0"
        for h in (0, 2): a(f"v_pk_mul_f32 {vr(t+h,2)}, {vr(x+h,2)}, {vr(x+h,2)}")
        for h in (0, 2): a(f"v_pk_fma_f32 {vr(t+h,2)}, {vr(t+h,2)}, s[{sC2}:{sC2+1}], {vr(self.vC1,2)}")
        for h in (0, 2): a(f"v_pk_mul_f32 {vr(t+h,2)}, {vr(t+h,2)}, {vr(x+h,2)}")
        for h in range(4): a(f"v_exp_f32 v{t+h}, v{t+h}")
        for h in (0, 2):
            if one is None: a(f"v_pk_add_f32 {vr(t+h,2)}, {vr(t+h,2)}, 1.0 op_sel_hi:[1,0]")
            else: a(f"v_pk_add_f32 {vr(t+h,2)}, {vr(t+h,2)}, {o}")
        for h in range(4): a(f"v_rcp_f32 v{t+h}, v{t+h}")
        for h in (0, 2): a(f"v_pk_mul_f32 {vr(x+h,2)}, {vr(x+h,2)}, {vr(t+h,2)}")

    def gather(self, vo, P, T):
        a = self.a
        a(f"s_mul_i32 s{sT0}, s{sGRP}, {MB}")
        a(f"s_add_u32 s{sT0}, s{sT0}, s{sROLE}")
        a(f"s_mul_i32 s{sT0}, s{sT0}, {9 * UNIT}")
        for n in range(9):
            if n and n % 2 == 0: a(f"s_add_u32 s{sT0}, s{sT0}, {2 * UNIT}")
            o = f" offset:{UNIT}" if n % 2 else ""
            a(f"buffer_load_dwordx2 {vr(P+2*n,2)}, v{vo}, s[{SWS}:{SWS+3}], s{sT0} offen{o} sc1")
        a(f"s_mov_b32 s{sC2}, {hx(f2u(C2))}\ns_mov_b32 s{sC2+1}, {hx(f2u(C2))}")
        a(f"v_mov_b32 v{self.vC1}, {hx(f2u(C1))}\nv_mov_b32 v{self.vC1+1}, {hx(f2u(C1))}")
        a(f"s_mov_b32 s{sT1}, 0xffff0000")
        for n in range(9):
            a(f"s_waitcnt vmcnt({8-n})")
            if self.isC and n in (0, 8): self.cyc(1 if n == 0 else 2)
            d = T if n == 0 else T + 4
            for h in (0, 1):
                a(f"v_lshlrev_b32 v{d+2*h}, 16, v{P+2*n+h}")
                a(f"v_and_b32 v{d+2*h+1}, s{sT1}, v{P+2*n+h}")
            if n:
                for h in (0, 2): a(f"v_pk_add_f32 {vr(T+h,2)}, {vr(T+h,2)}, {vr(T+4+h,2)}")
        self.gelu4(T, T + 4, None)
        a(f"v_cvt_pk_bf16_f32 v{T}, v{T}, v{T+1}")
        a(f"v_cvt_pk_bf16_f32 v{T+1}, v{T+2}, v{T+3}")
        a(f"v_add_u32 v{vo}, {FB}, v{vo}")
        a(f"ds_write_b64 v{vo}, {vr(T,2)}")

    def loader_p2(self):
        a = self.a
        WO = 94
        GEr = 58
        ACC = 20
        Fb = 4
        vAd, vO = 2, 3
        self.vC1 = 56
        a(f"""
        v_lshrrev_b32 v{vAd}, 2, v0
        v_mul_u32_u24 v{vAd}, 288, v{vAd}
        v_and_b32 v1, 3, v0
        v_lshl_add_u32 v{vO}, v1, 3, v{vAd}
        v_lshl_add_u32 v{vAd}, v1, 4, v{vAd}
        v_add_u32 v{vO}, {LWO}, v{vO}
        v_add_u32 v{vAd}, {LWO}, v{vAd}
        """)
        n = 0
        for c in range(5):
            for t in range(9):
                for h in range(2 if c < 4 else 1):
                    ro = (32 * c + 16 * h) * 288
                    d = WO + 36 * c + 4 * t + 2 * h if c < 4 else WO + 144 + 2 * t
                    if t < 8: a(f"ds_read_b64_tr_b16 {vr(d,2)}, v{vAd} offset:{ro + 64 * (t >> 1) + 8 * (t & 1)}")
                    else: a(f"ds_read_b64_tr_b16 {vr(d,2)}, v{vO} offset:{ro + 256}")
        a(f"""
        v_lshrrev_b32 v1, 4, v0
        v_lshlrev_b32 v{vAd}, 8, v1
        v_bfe_u32 v{Fb}, v0, 3, 1
        s_lshl_b32 s{sT0}, s{sLW}, 1
        v_add_u32 v{Fb}, s{sT0}, v{Fb}
        v_lshl_add_u32 v{vAd}, v{Fb}, 4, v{vAd}
        s_cmp_gt_u32 s{sGRP}, 8
        s_cselect_b32 s{sT1}, 128, 0
        s_cselect_b32 s{sT2}, 8, 0
        s_cselect_b32 s{sT3}, -1, 1000
        s_mul_i32 s{sB}, s{sGRP}, 9216
        s_add_u32 s{sB}, s{sB}, s{sT1}
        s_add_u32 s{sB}, s{sB}, {GE_OFF}
        """)
        a(f"""
        s_mul_i32 s{sT0}, s{sGRP}, {R}
        s_lshr_b32 s{sT1}, s{sROLE}, 1
        s_add_u32 s{sT0}, s{sT0}, s{sT1}
        s_and_b32 s{sT1}, s{sROLE}, 1
        s_mul_i32 s{sT1}, s{sT1}, 56
        s_add_u32 s{sT0}, s{sT0}, s{sT1}
        s_sub_u32 s{sT0}, s{sT0}, s{sT2}
        v_and_b32 v{Fb+1}, 7, v0
        v_mad_u32_u24 v{Fb+2}, v{Fb+1}, 7, s{sT0}
        v_cmp_gt_u32 vcc, s{sT3}, v{Fb+2}
        v_lshl_add_u32 v{Fb+2}, v{Fb+2}, 3, v{Fb}
        v_mul_u32_u24 v{Fb+2}, 288, v{Fb+2}
        v_lshl_add_u32 v{Fb+2}, v1, 3, v{Fb+2}
        v_bfrev_b32 v{Fb+3}, 1
        v_cndmask_b32 v{vO}, v{Fb+3}, v{Fb+2}, vcc
        """)
        a("s_waitcnt lgkmcnt(0)")
        a("s_barrier")
        for t in range(9):
            if t == 4 or t == 8: a(f"s_add_u32 s{sB}, s{sB}, 4096")
            o = f" offset:{1024 * (t % 4)}" if t % 4 else ""
            a(f"buffer_load_dwordx4 {vr(GEr+4*t,4)}, v{vAd}, s[{SWS}:{SWS+3}], s{sB} offen{o} sc1")
        a(f"s_cmp_lg_u32 s{sLW}, 0")
        a("s_cbranch_scc1 L_nog")
        a("s_mov_b32 exec_hi, 0")
        a(f"v_lshlrev_b32 v{Fb+4}, 3, v0")
        a(f"v_add_u32 v{Fb+4}, 2048, v{Fb+4}")
        self.gather(Fb + 4, ACC, ACC + 18)
        a("s_mov_b64 exec, -1")
        a("s_waitcnt lgkmcnt(0)")
        a("L_nog:")
        a(f"""
        v_lshlrev_b32 v{vAd}, 7, v1
        v_lshl_add_u32 v{vAd}, v{Fb+1}, 4, v{vAd}
        v_add_u32 v{vAd}, {FE}, v{vAd}
        v_lshl_add_u32 v1, v1, 3, v{vO}
        s_barrier
        s_waitcnt vmcnt(0)
        s_barrier
        """)
        self.stamp(3)
        def rd(c):
            b = Fb + 8 * (c & 1)
            a(f"ds_read_b128 {vr(b,4)}, v{vAd} offset:{1024 * c}")
            if c < 4: a(f"ds_read_b128 {vr(b+4,4)}, v{vAd} offset:{1024 * c + 512}")
        rd(0); rd(1)
        for c in range(5):
            b = Fb + 8 * (c & 1); nv = 8 if c < 4 else 4
            a(f"s_waitcnt lgkmcnt({0 if c == 4 else (1 if c == 3 else 2)})")
            ge = GEr + 8 * c
            for h in range(0, nv, 2): a(f"v_pk_add_f32 {vr(ge+h,2)}, {vr(ge+h,2)}, {vr(b+h,2)}")
            if c + 2 <= 4: rd(c + 2)
            for h in range(nv): a(f"v_exp_f32 v{ge+h}, v{ge+h}")
            for h in range(0, nv, 2): a(f"v_pk_add_f32 {vr(ge+h,2)}, {vr(ge+h,2)}, 1.0 op_sel_hi:[1,0]")
            for h in range(nv): a(f"v_rcp_f32 v{ge+h}, v{ge+h}")
            for h in range(0, nv, 2): a(f"v_pk_fma_f32 {vr(ge+h,2)}, {vr(ge+h,2)}, -2.0, 1.0 op_sel_hi:[1,0,0]")
            for h in range(0, nv, 2): a(f"v_cvt_pk_bf16_f32 v{ge+h//2}, v{ge+h}, v{ge+h+1}")
            for t in range(9):
                cc = "0" if c == 0 else vr(ACC + 4 * t, 4)
                if c < 4: a(f"v_mfma_f32_16x16x32_bf16 {vr(ACC+4*t,4)}, {vr(WO+36*c+4*t,4)}, {vr(ge,4)}, {cc}")
                else: a(f"v_mfma_f32_16x16x16_bf16 {vr(ACC+4*t,4)}, {vr(WO+144+2*t,2)}, {vr(ge,2)}, {cc}")
        for cp in range(4):
            s = ACC + 8 * cp; d = Fb + 4 * cp
            for h in range(4): a(f"v_cvt_pk_bf16_f32 v{d+h}, v{s+2*h}, v{s+2*h+1}")
            o = f" offset:{64 * cp}" if cp else ""
            a(f"buffer_store_dwordx4 {vr(d,4)}, v1, s[{SOUT}:{SOUT+3}], 0 offen{o}")
        s = ACC + 32
        for h in range(2): a(f"v_cvt_pk_bf16_f32 v{GEr+h}, v{s+2*h}, v{s+2*h+1}")
        a(f"buffer_store_dwordx2 {vr(GEr,2)}, v{vO}, s[{SOUT}:{SOUT+3}], 0 offen offset:256")
        if self.dev:
            a("s_waitcnt vmcnt(0)"); self.stamp(4); self.dump()
        a("s_endpgm")

    def dump(self):
        a = self.a
        a(f"s_lshl_b32 s{sT0}, s2, 3\ns_add_u32 s{sT0}, s{sT0}, s{sWAVE}\ns_lshl_b32 s{sT0}, s{sT0}, 8\ns_add_u32 s{sT0}, s{sT0}, {STAMP_OFF}")
        if not self.isC:
            for i in range(36): a(f"v_writelane_b32 v255, s{64+i}, {i}")
        a("v_writelane_b32 v255, s3, 61")
        a("s_getreg_b32 s3, hwreg(HW_REG_HW_ID)\nv_writelane_b32 v255, s3, 60\ns_getreg_b32 s3, hwreg(HW_REG_XCC_ID)\nv_writelane_b32 v255, s3, 59")
        a(f"v_writelane_b32 v255, s{sGRP}, 62\nv_writelane_b32 v255, s{sROLE}, 63")
        a(f"v_lshlrev_b32 v1, 2, v0\nbuffer_store_dword v255, v1, s[{SWS}:{SWS+3}], s{sT0} offen")

    def afrags(self, dst, vad, vad8, base):
        a = self.a
        for c in range(5):
            for t in range(3):
                for h in range(2 if c < 4 else 1):
                    ro = base + (32 * c + 16 * h) * 288
                    d = dst + 12 * c + 4 * t + 2 * h if c < 4 else dst + 48 + 2 * t
                    if t < 2: a(f"ds_read_b64_tr_b16 {vr(d,2)}, v{vad} offset:{ro + 32 * t}")
                    else: a(f"ds_read_b64_tr_b16 {vr(d,2)}, v{vad8} offset:{ro + 256}")

    def smallgemm(self, acc, A, B):
        a = self.a
        for c in range(5):
            for t in range(3):
                cc = "0" if c == 0 else vr(acc + 4 * t, 4)
                if c < 4: a(f"v_mfma_f32_16x16x32_bf16 {vr(acc+4*t,4)}, {vr(A+12*c+4*t,4)}, {vr(B+4*c,4)}, {cc}")
                else: a(f"v_mfma_f32_16x16x16_bf16 {vr(acc+4*t,4)}, {vr(A+48+2*t,2)}, {vr(B+16,2)}, {cc}")
        a(f"s_mov_b32 s{sC1}, {hx(f2u(K2))}\ns_mov_b32 s{sC1+1}, {hx(f2u(K2))}")
        for h in range(0, 12, 2): a(f"v_pk_mul_f32 {vr(acc+h,2)}, {vr(acc+h,2)}, s[{sC1}:{sC1+1}]")

    def compute(self):
        a = self.a; self.isC = True
        aE = [2, 3, 4, 5]; aO = [6, 7, 8, 9]; cst = [10, 11, 12, 13]; aW = 14; l8 = 15
        ACC = 16; W = 32; X = 96
        vJ, vG = 172, 173
        vT8, vTw = 174, 175
        a("L_cw:")
        a(f"""
        v_and_b32 v{vJ}, 15, v0
        v_lshrrev_b32 v{vG}, 4, v0
        v_lshrrev_b32 v{vT8}, 2, v0
        v_mul_u32_u24 v{vT8}, 288, v{vT8}
        v_and_b32 v1, 3, v0
        v_lshl_add_u32 v{vT8}, v1, 3, v{vT8}
        s_lshl_b32 s{sT0}, s{sLW}, 6
        v_add_u32 v{vTw}, s{sT0}, v{vT8}
        s_cmp_gt_u32 s{sROLE}, 8
        s_cbranch_scc1 L_chelp
        v_lshlrev_b32 v{l8}, 3, v0
        v_mul_u32_u24 v{cst[0]}, 1056, v{vJ}
        v_lshl_add_u32 v{cst[0]}, v{vG}, 4, v{cst[0]}
        s_lshl_b32 s{sT0}, s{sLW}, 8
        v_add_u32 v{cst[0]}, s{sT0}, v{cst[0]}
        """)
        for c in (1, 2, 3):
            a(f"s_cmp_ge_u32 s{sLW}, {4 - c}\ns_cselect_b32 s{sT0}, 32, 0\nv_add_u32 v{cst[c]}, s{sT0}, v{cst[0]}")
        for r in range(1, 9):
            a(f"s_mov_b32 s{sTAB+r}, {EVEN[r]}\ns_mov_b32 s{sTAB+9+r}, {ODD[r]}\ns_mov_b32 s{sTAB+18+r}, {WSLOT[r%3]}")
        for c in range(4):
            a(f"v_add_u32 v{aE[c]}, {EVEN[0]}, v{cst[c]}\nv_add_u32 v{aO[c]}, {ODD[0]}, v{cst[c]}")
        a(f"v_add_u32 v{aW}, {WSLOT[0]}, v{l8}")
        for i in range(16): a(f"v_mov_b32 v{ACC+i}, 0")
        a(f"s_mov_b32 s{sR}, 0")
        def rdX(u):
            d = u >> 1; cl = (d >> 1) & 3
            off = 128 * d + (32 if d >= 8 else 0)
            return f"ds_read_b128 {vr(X+4*u,4)}, v{(aO if u & 1 else aE)[cl]} offset:{off}"
        def rdW(m, h): return f"ds_read_b64_tr_b16 {vr(W+4*m+2*h,2)}, v{aW} offset:{1024*m+512*h}"
        def Gm(m): return [rdW(m, 0), rdW(m, 1), rdX(m + 3)]
        first = [rdX(0), rdX(1), rdX(2)] + Gm(0) + Gm(1) + Gm(2) + Gm(3)
        def mf(m, i): return f"v_mfma_f32_16x16x32_bf16 {vr(ACC+4*i,4)}, {vr(W+4*m,4)}, {vr(X+4*(m+i),4)}, {vr(ACC+4*i,4)}"
        def inter(mfs, fill):
            n = len(mfs); k = 0
            for i, x in enumerate(mfs):
                a(x)
                upto = (len(fill) * (i + 1) + n - 1) // n
                while k < upto: a(fill[k]); k += 1
        a("s_waitcnt lgkmcnt(0)")
        self.stamp(0)
        a("s_barrier")
        self.stamp(1, 8)
        for x in first: a(x)
        a("L_c1:")
        for m in range(13):
            a("s_waitcnt lgkmcnt(9)")
            if m < 12: fill = Gm(m + 4)
            else:
                fill = [f"v_add_u32 v{aW}, s{sC}, v{l8}"]
                for c in range(4): fill += [f"v_add_u32 v{aE[c]}, s{sA}, v{cst[c]}", f"v_add_u32 v{aO[c]}, s{sB}, v{cst[c]}"]
            if m == 10: fill = fill + [f"s_add_u32 s{sR}, s{sR}, 1", f"s_min_u32 m0, s{sR}, 8"]
            if m == 11: fill = fill + [f"s_movrels_b32 s{sA}, s{sTAB}", f"s_movrels_b32 s{sB}, s{sTAB+9}", f"s_movrels_b32 s{sC}, s{sTAB+18}"]
            inter([mf(m, i) for i in range(4)], fill)
        if self.dev: a(f"s_add_u32 s{sT0}, s{sR}, 10")
        a(f"s_cmp_eq_u32 s{sR}, 9")
        a("s_waitcnt lgkmcnt(0)"); self.stamp(f"s{sT0}"); a("s_nop 0" if "nobar" in self.o else "s_barrier")
        a("s_cbranch_scc1 L_c1tail")
        inter([mf(m, i) for m in (13, 14) for i in range(4)], first)
        a(f"s_cmp_gt_u32 s{sR}, 5")
        a("s_cbranch_scc1 L_c1")
        for i in range(4): a(mf(15, i))
        a("s_branch L_c1")
        a("L_c1tail:")
        if self.lite and "cyc" not in self.o: self.stamp(19)
        self.cyc(0)
        if "nobar" in self.o: a("s_barrier")
        W2 = 176
        HE = 200
        vHa, vHe = 216, 217
        vOne = 218
        self.vC1 = 220
        vW2a, vW2b = 222, 223
        TMP = 224
        A2 = 32
        H = 96
        def rdW2(k):
            b = W2 + 12 * (k & 1); o = 9216 * (k % 7)
            return [f"ds_read_b64_tr_b16 {vr(b+4*t+2*h,2)}, v{vW2a if t < 2 else vW2b} offset:{o + 4608*h + (32*t if t < 2 else 256)}"
                    for t in range(3) for h in range(2)]
        pre = [f"v_mov_b32 v{vW2a}, v{vTw}", f"v_mov_b32 v{vW2b}, v{vT8}"] + rdW2(0)
        pre += [f"s_mul_i32 s{sT0}, s{sGRP}, 14", f"s_sub_u32 s{sT0}, s{sT0}, 1", f"v_add_u32 v1, s{sT0}, v{vJ}",
                f"s_movk_i32 s{sT1}, 251", f"s_movk_i32 s{sT2}, 125",
                f"v_cmp_gt_u32 vcc, s{sT1}, v1", f"v_cmp_ne_u32 s[{sEX}:{sEX+1}], s{sT2}, v1",
                f"v_mov_b32 v{vOne}, 0x7f800000", f"s_and_b64 vcc, vcc, s[{sEX}:{sEX+1}]",
                f"v_mov_b32 v{self.vC1}, {hx(f2u(C1))}", f"v_mov_b32 v{self.vC1+1}, {hx(f2u(C1))}",
                f"v_cndmask_b32 v{vOne}, v{vOne}, 1.0, vcc",
                f"s_mov_b32 s{sC2}, {hx(f2u(C2))}", f"s_mov_b32 s{sC2+1}, {hx(f2u(C2))}",
                f"v_mov_b32 v{vOne+1}, v{vOne}"]
        inter([mf(m, i) for m in (13, 14) for i in range(4)], pre)
        a(f"""
        v_lshlrev_b32 v{vHa}, 11, v{vG}
        v_add_u32 v{vHa}, {HB}, v{vHa}
        s_lshl_b32 s{sT0}, s{sLW}, 5
        v_lshl_add_u32 v1, v{vJ}, 7, v{vHa}
        v_add_u32 v1, s{sT0}, v1
        v_mul_u32_u24 v{vHe}, 112, v{vJ}
        v_add_u32 v{vHa}, v{vHe}, v{vHa}
        v_add_u32 v{vHe}, s{sT0}, v{vHa}
        """)
        self.cyc(1)
        for i in range(4):
            self.gelu4(ACC + 4 * i, TMP + 4 * (i & 1), vOne)
            d = TMP + 8 + 4 * (i >> 1) + 2 * (i & 1)
            a(f"v_cvt_pk_bf16_f32 v{d}, v{ACC+4*i}, v{ACC+4*i+1}")
            a(f"v_cvt_pk_bf16_f32 v{d+1}, v{ACC+4*i+2}, v{ACC+4*i+3}")
            if i & 1: a(f"ds_write_b128 v1, {vr(TMP+8+4*(i>>1),4)} offset:{16*(i>>1)}")
        self.cyc(2)
        a("s_waitcnt lgkmcnt(0)")
        self.cyc(3); self.cycflush(40, 4)
        self.stamp(2)
        a("s_barrier")
        def rdH(q): return f"ds_read_b128 {vr(H+4*(q%16),4)}, v{vHa} offset:{16*q}"
        def rdE(q): return f"ds_read_b128 {vr(HE+4*(q%4),4)}, v{vHe} offset:{16*q}"
        for q in range(7): a(rdH(q))
        a(rdE(0)); a(rdE(1))
        for k in range(16):
            b = W2 + 12 * (k & 1)
            mfs = []
            for rho in range(7):
                for t in range(2):
                    d = A2 + 8 * rho + 4 * t
                    mfs.append(f"v_mfma_f32_16x16x32_bf16 {vr(d,4)}, {vr(b+4*t,4)}, {vr(H+4*((rho+k)%16),4)}, {vr(d,4) if k else 0}")
            for e in range(2):
                d = A2 + 56 + 4 * e
                mfs.append(f"v_mfma_f32_16x16x32_bf16 {vr(d,4)}, {vr(b+8,4)}, {vr(HE+4*((e+k)%4),4)}, {vr(d,4) if k else 0}")
            fill = []
            if k < 15:
                if (k + 1) % 7 == 0: fill += [f"v_add_u32 v{vW2a}, {7*9216}, v{vW2a}", f"v_add_u32 v{vW2b}, {7*9216}, v{vW2b}"]
                fill += rdW2(k + 1) + [rdH(k + 7), rdE(k + 2)]
            a("s_waitcnt lgkmcnt(0)")
            if k in (7, 11): self.stamp(21 if k == 7 else 22); a("s_barrier")
            inter(mfs[:10], fill)
            for x in mfs[10:]: a(x)
        a(f"""
        v_lshrrev_b32 v1, 3, v{vJ}
        v_mul_u32_u24 v1, {9*UNIT}, v1
        v_and_b32 v2, 7, v{vJ}
        v_lshl_add_u32 v2, v{vG}, 3, v2
        v_lshl_add_u32 v3, v2, 3, v1
        v_lshl_add_u32 v2, v2, 4, v1
        s_mul_i32 s{sA}, s{sGRP}, {MB*9}
        s_add_u32 s{sA}, s{sA}, s{sROLE}
        s_mul_i32 s{sA}, s{sA}, {UNIT}
        s_mul_i32 s{sB}, s{sLW}, {4*9*UNIT}
        s_add_u32 s{sB}, s{sB}, s{sA}
        s_add_u32 s{sC}, s{sB}, {2*9*UNIT}
        s_cmp_eq_u32 s{sLW}, 3
        s_cselect_b32 s{sC}, 0x8000000, s{sC}
        s_lshl_b32 s{sT0}, s{sLW}, 9
        s_add_u32 s{sA}, s{sA}, s{sT0}
        """)
        for rho in range(7):
            s = A2 + 8 * rho; d = TMP + 4 * (rho & 3)
            for h in range(4): a(f"v_cvt_pk_bf16_f32 v{d+h}, v{s+2*h}, v{s+2*h+1}")
            if rho: a(f"s_add_u32 s{sA}, s{sA}, {2*9*UNIT}")
            a(f"buffer_store_dwordx4 {vr(d,4)}, v2, s[{SWS}:{SWS+3}], s{sA} offen sc1")
        for e in range(2):
            s = A2 + 56 + 4 * e; d = A2 + 2 * e
            for h in range(2): a(f"v_cvt_pk_bf16_f32 v{d+h}, v{s+2*h}, v{s+2*h+1}")
            a(f"buffer_store_dwordx2 {vr(d,2)}, v3, s[{SWS}:{SWS+3}], s{sB if e == 0 else sC} offen offset:2048 sc1")
        self.stamp(3, 9)
        a("s_branch L_ccommon")
        AF = 32; BF = 96; AC = 16
        a("L_chelp:")
        a(f"s_cmp_lg_u32 s{sROLE}, 9")
        a("s_waitcnt lgkmcnt(0)")
        a("s_cbranch_scc1 L_chelp2")
        a(f"v_mul_u32_u24 v1, 288, v{vJ}\nv_lshl_add_u32 v1, v{vG}, 3, v1")
        for t in range(9): a(f"buffer_load_dwordx2 {vr(BF+2*t,2)}, v1, s[{SG}:{SG+3}], 0 offen offset:{32*t}")
        a(f"v_add_u32 v2, {LWG}, v{vTw}\nv_add_u32 v3, {LWG}, v{vT8}")
        a("s_barrier")
        self.afrags(AF, 2, 3, 0)
        a("s_waitcnt vmcnt(0) lgkmcnt(0)")
        self.smallgemm(AC, AF, BF)
        a(f"""
        v_lshlrev_b32 v1, 4, v0
        s_mul_i32 s{sA}, s{sGRP}, 9216
        s_add_u32 s{sA}, s{sA}, {GE_OFF}
        s_add_u32 s{sB}, s{sA}, 8192
        s_lshl_b32 s{sT0}, s{sLW}, 11
        s_add_u32 s{sA}, s{sA}, s{sT0}
        s_cmp_eq_u32 s{sLW}, 0
        s_cselect_b32 s{sB}, s{sB}, 0x8000000
        buffer_store_dwordx4 {vr(AC,4)}, v1, s[{SWS}:{SWS+3}], s{sA} offen sc1
        buffer_store_dwordx4 {vr(AC+4,4)}, v1, s[{SWS}:{SWS+3}], s{sA} offen offset:1024 sc1
        buffer_store_dwordx4 {vr(AC+8,4)}, v1, s[{SWS}:{SWS+3}], s{sB} offen sc1
        s_branch L_ccommon
        L_chelp2:
        s_lshl_b32 s{sT0}, s{sWAVE}, 4
        s_add_u32 s{sT0}, s{sT0}, s{sROLE}
        s_cmp_lg_u32 s{sT0}, 10
        s_cbranch_scc1 L_nozero
        v_lshrrev_b32 v1, 2, v0
        v_and_b32 v2, 3, v0
        v_lshlrev_b32 v2, 4, v2
        v_lshl_add_u32 v1, v1, 7, v2
        v_mov_b32 v4, 0
        v_mov_b32 v5, 0
        v_mov_b32 v6, 0
        v_mov_b32 v7, 0
        s_mul_i32 s{sT0}, s{sGRP}, {MB*128}
        s_add_u32 s{sT0}, s{sT0}, {FLAG_OFF}
        s_mov_b32 exec_hi, 0xffffff
        buffer_store_dwordx4 v[4:7], v1, s[{SWS}:{SWS+3}], s{sT0} offen sc1
        s_lshl_b32 s{sT0}, s{sGRP}, 2
        v_mov_b32 v2, 1
        s_mov_b64 exec, 1
        s_waitcnt vmcnt(0)
        buffer_store_dword v2, off, s[{SDBG}:{SDBG+3}], s{sT0} sc1
        s_mov_b64 exec, -1
        L_nozero:
        s_barrier
        L_ccommon:
        s_mul_i32 s{sD}, s{sGRP}, {MB*128}
        s_add_u32 s{sD}, s{sD}, {FLAG_OFF}
        s_lshl_b32 s{sT0}, s{sROLE}, 2
        v_lshl_add_u32 v7, v0, 7, s{sT0}
        v_mov_b32 v8, 1
        s_waitcnt vmcnt(0)
        """)
        self.stamp(4)
        a("s_barrier")
        a(f"""
        s_cmp_lg_u32 s{sWAVE}, 0
        s_cbranch_scc1 L_noadd
        s_cmp_gt_u32 s{sROLE}, 9
        s_cbranch_scc1 L_noadd
        s_mov_b64 exec, 0x3fff
        buffer_store_dword v8, v7, s[{SWS}:{SWS+3}], s{sD} offen sc1
        s_mov_b64 exec, -1
        L_noadd:
        """)
        self.afrags(AF, vTw, vT8, LWF)
        a(f"""
        s_lshl_b32 s{sT0}, s{sLW}, 9
        v_lshlrev_b32 v4, 3, v0
        v_add_u32 v4, s{sT0}, v4
        v_and_b32 v2, 7, v{vJ}
        v_lshl_add_u32 v2, v{vG}, 3, v2
        v_lshlrev_b32 v3, 3, v2
        v_lshlrev_b32 v2, 4, v2
        v_add_u32 v3, {FB+2048}, v3
        v_add_u32 v5, {FE}, v2
        s_lshl_b32 s{sT0}, s{sLW}, 10
        v_add_u32 v6, s{sT0}, v5
        v_add_u32 v2, {FB}, v2
        s_cmp_lg_u32 s{sWAVE}, 1
        s_cbranch_scc1 L_nopoll
        s_lshl_b32 s{sT0}, s{sROLE}, 7
        s_add_u32 s{sT0}, s{sT0}, s{sD}
        s_mov_b32 s{sT1}, 0
        v_lshlrev_b32 v7, 2, v0
        s_mov_b64 exec, 0x3ff
        L_poll:
        buffer_load_dword v1, v7, s[{SWS}:{SWS+3}], s{sT0} offen sc1
        s_add_u32 s{sT1}, s{sT1}, 1
        s_waitcnt vmcnt(0)
        v_cmp_ne_u32 vcc, 1, v1
        s_cbranch_vccz L_polld
        s_cmp_lt_u32 s{sT1}, 0x40000
        s_cbranch_scc1 L_poll
        L_polld:
        s_mov_b64 exec, -1
        L_nopoll:
        s_waitcnt lgkmcnt(0)
        """)
        self.stamp(5)
        a("s_barrier")
        self.vC1 = 220
        self.cyc(0)
        self.gather(4, BF, BF + 20)
        a("s_waitcnt lgkmcnt(0)")
        self.cyc(3); self.cycflush(50, 4)
        self.stamp(6)
        self.cyc(0)
        a("s_barrier")
        self.cyc(1)
        for c in range(4): a(f"ds_read_b128 {vr(BF+4*c,4)}, v2 offset:{512*c}")
        a(f"ds_read_b64 {vr(BF+16,2)}, v3")
        a("s_waitcnt lgkmcnt(0)")
        self.cyc(2)
        self.smallgemm(AC, AF, BF)
        self.cyc(3)
        a(f"ds_write_b128 v6, {vr(AC,4)}")
        a(f"ds_write_b128 v6, {vr(AC+4,4)} offset:512")
        a(f"ds_write_b128 v5, {vr(AC+8,4)} offset:4096")
        a("s_waitcnt lgkmcnt(0)")
        self.cycflush(44, 4); self.cyc(0); self.cycflush(48, 1)
        self.stamp(7)
        a("s_barrier")
        if self.dev: self.dump()
        a("L_end:")
        a("s_endpgm")

    def build(self):
        self.prologue(); self.loader(); self.compute()
        body = self.a.finish()
        ref = open(f"cdna_kernels/{NAME}.s.ref").read().split('\n')
        head = [l for l in ref if l.startswith(';') and '@launch' not in l]
        out = '\n'.join(head) + f"\n; @launch grid=({NWG},1,1) block=(512,1,1) lds=163840\n"
        out += f""".amdgcn_target "amdgcn-amd-amdhsa--gfx950"
.text
.globl {NAME}_kernel
.p2align 8
.type {NAME}_kernel,@function
{NAME}_kernel:
{body}.section .rodata,"a"
.p2align 6
.amdhsa_kernel {NAME}_kernel
  .amdhsa_next_free_vgpr 256
  .amdhsa_next_free_sgpr 102
  .amdhsa_accum_offset 256
  .amdhsa_group_segment_fixed_size 0
  .amdhsa_kernarg_size 80
  .amdhsa_user_sgpr_count 2
  .amdhsa_user_sgpr_kernarg_segment_ptr 1
  .amdhsa_system_sgpr_workgroup_id_x 1
.end_amdhsa_kernel
"""
        return out

if __name__ == "__main__":
    dev = "dev" in sys.argv[2:]
    open(sys.argv[1], "w").write(Gen(dev, sys.argv[2:]).build())

def check_ws(ws, fpre, ge, bf):
    import numpy as np
    p = bf(ws[:GE_OFF].view(np.uint16)).reshape(G, MB, 9, UNIT // 2)
    s = p.sum(axis=2)
    main = s[:, :, :1024].reshape(G, MB, 4, 4, 8, 2, 4)
    full = np.zeros((G, MB, 8, 144), np.float32)
    for w in range(4):
        for gg in range(4):
            for hf in range(2):
                full[:, :, :, 32*w + 16*hf + 4*gg: 32*w + 16*hf + 4*gg + 4] = main[:, :, w, gg, :, hf, :]
    ex = s[:, :, 1024:].reshape(G, MB, 4, 8, 4)
    for gg in range(4): full[:, :, :, 128 + 4*gg:132 + 4*gg] = ex[:, :, gg]
    worst = []
    for grp in range(G):
        m = 0
        for u in range(MB):
            for row in range(8):
                Fv = R*grp + (u >> 1) + 7*(8*(u & 1) + row)
                if Fv < 1000: r = fpre[0, Fv]
                elif 1008 <= Fv < 2008: r = fpre[1, Fv - 1008]
                else: continue
                d = np.abs(full[grp, u, row] - r)
                m = max(m, np.inf if np.isnan(d).any() else d.max())
        worst.append(round(float(m), 4))
    print("fpre err per group", worst, "scale", np.abs(fpre).mean())
    gw = ws[GE_OFF:GE_OFF + G*9216].view(np.float32).reshape(G, 9, 4, 16, 4)
    gr = (ge.reshape(16, 9, 4, 4) * K2).transpose(1, 2, 0, 3)
    print("ge err", np.abs(gw - gr[None]).max())
```

```python
import sys, struct
from asmlib import Asm, vr, sr

NAME = "standalone__seq2seq_rnn_t_joint__speech"
def f2u(x): return struct.unpack('<I', struct.pack('<f', x))[0]
def hx(x): return hex(x & 0xffffffff)

R = 112; G = 18; MB = 14; NWG = G * MB
XBYTES = 2304000; WBYTES = 1285632; GBYTES = 4608; MBYTES = 41472; OBYTES = 4608000
UNIT = 2304
GE_OFF = NWG * 9 * UNIT
FLAG_OFF = GE_OFF + G * 9216
STAMP_OFF = FLAG_OFF + NWG * 128
WS_USED = STAMP_OFF + NWG * 8 * 256
OOB = 0x80000000
XS = 17952; WSL = 16384
HB = 163840 - 8192
XL4 = HB - XS; W2s = XL4 - WSL; X3 = W2s - XS; W1s = X3 - WSL; X2 = W1s - XS
W0s = X2 - WSL; X1 = W0s - XS; X0 = X1 - XS
assert X0 >= 0 and X0 % 32 == 0
XSL = [X0, X1, X2, X3]; WSLOT = [W0s, W1s, W2s]
assert X2 >= 4 * 9216 and X3 >= 8 * 9216 and HB >= 16 * 9216
LWF = 0; LWO = 41472; LWG = 82944; FB = 126976; FE = 131072
EVEN = [X0, X0 + 64, X2, X2 + 64, X0, X0 + 64, X2, X2 + 64, XL4]
ODD = [XL4 + 64, X1, X1 + 64, X3, X3 + 64, X1, X1 + 64, X3, X3 + 64]
ITEM = [0, 5, 1, 6, 2, 7, 3, 8]
ROLE = [0, 1, 9, 2, 3, 10, 4, 5, 11, 6, 7, 12, 8, 13]
C1 = -2.3022082; C2 = -0.10294324; K2 = 2.8853900817779268

SX, SW1, SW2, SG, SWF, SWG, SWO, SOUT, SDBG, SWS = 4, 8, 12, 16, 20, 24, 28, 32, 36, 40
sGRP, sROLE, sWAVE, sLW = 44, 45, 46, 47
sT0, sT1, sT2, sT3 = 48, 49, 50, 51
sA, sB, sC, sD = 52, 53, 54, 55
sEX = 56
sC1, sC2 = 58, 60
sR = 62
sK2 = 63
sTAB = 64
sST = 100

class Gen:
    def __init__(self, dev=False, opts=()):
        self.a = Asm(); self.dev = dev; self.nst = 0; self.o = set(opts); self.lite = "lite" in self.o
        d = [x[4:] for x in self.o if x.startswith("diag")]; self.diag = d[0].split("_") if d else None

    def stamp(self, idx, clk=None):
        if self.diag and not self.isC and not self.inhelp:
            for k in (0, 1):
                if str(idx) == self.diag[k]: self.a(f"s_memrealtime s[{98-2*k}:{99-2*k}]")
        if not self.dev: return
        if self.lite and (isinstance(idx, str) or 11 <= idx <= 18 or 20 <= idx <= 31): return
        a = self.a
        for op, ix in (("s_memrealtime", idx), ("s_memtime", clk)):
            if ix is None: continue
            a(f"{op} s[{sST}:{sST+1}]")
            a("s_waitcnt lgkmcnt(0)")
            if idx == 0: a("s_mov_b32 s3, s98")
            if self.isC:
                if isinstance(ix, str):
                    a(f"s_mov_b32 m0, {ix}"); ix = "m0"
                a(f"v_writelane_b32 v255, s{sST}, {ix}")
            else: a(f"s_mov_b32 s{64+ix}, s{sST}")

    def cyc(self, k):
        if self.dev and "cyc" in self.o: self.a(f"s_memtime s[{92+2*k}:{93+2*k}]")
    def cycflush(self, base, n):
        if self.dev and "cyc" in self.o:
            self.a("s_waitcnt lgkmcnt(0)")
            for k in range(n): self.a(f"v_writelane_b32 v255, s{92+2*k}, {base+k}")

    def srd(self, s, off, nbytes):
        a = self.a
        a(f"s_load_dwordx2 s[{s}:{s+1}], s[0:1], {off}")
        a(f"s_mov_b32 s{s+2}, {nbytes}")
        a(f"s_mov_b32 s{s+3}, 0x20000")

    def prologue(self):
        a = self.a
        if self.dev or self.diag: a("s_memrealtime s[98:99]")
        a(f"s_cmp_ge_u32 s2, {NWG}")
        a("s_cbranch_scc1 L_end")
        for s, off, n in ((SX, 0, XBYTES), (SW1, 8, WBYTES), (SW2, 16, WBYTES), (SG, 24, GBYTES), (SWF, 32, MBYTES),
                          (SWG, 40, MBYTES), (SWO, 48, MBYTES), (SOUT, 56, OBYTES), (SDBG, 64, 256), (SWS, 72, WS_USED)):
            self.srd(s, off, n)
        a(f"""
        v_lshrrev_b32 v1, 6, v0
        v_and_b32 v0, 63, v0
        s_and_b32 s{sT0}, s2, 7
        v_readfirstlane_b32 s{sWAVE}, v1
        s_lshr_b32 s{sT1}, s2, 3
        s_sub_i32 s{sT2}, s{sT0}, 4
        s_max_i32 s{sT2}, s{sT2}, 0
        s_lshl_b32 s{sT0}, s{sT0}, 5
        s_sub_u32 s{sT0}, s{sT0}, s{sT2}
        s_add_u32 s{sT0}, s{sT0}, s{sT1}
        s_mul_i32 s{sGRP}, s{sT0}, 4682
        s_lshr_b32 s{sGRP}, s{sGRP}, 16
        s_mul_i32 s{sT1}, s{sGRP}, {MB}
        s_sub_u32 s{sT0}, s{sT0}, s{sT1}
        s_lshl_b32 s{sT0}, s{sT0}, 2
        """)
        for L in range(NWG): assert (L * 4682) >> 16 == L // MB
        tab = sum(r << (4 * i) for i, r in enumerate(ROLE))
        a(f"""
        s_mov_b32 s{sT2}, {hx(tab)}
        s_mov_b32 s{sT3}, {hx(tab >> 32)}
        s_lshr_b64 s[{sT2}:{sT3}], s[{sT2}:{sT3}], s{sT0}
        s_and_b32 s{sROLE}, s{sT2}, 15
        s_and_b32 s{sLW}, s{sWAVE}, 3
        s_cmp_lt_u32 s{sWAVE}, 4
        s_cbranch_scc1 L_cw
        """)

    def dma(self, v, srd, soff, off=0):
        o = f" offset:{off}" if off else ""
        self.a(f"buffer_load_dwordx4 v{v}, s[{srd}:{srd+3}], {soff} offen{o} lds")

    def load_mat(self, srd, lds, vM):
        a = self.a
        for i in range(11):
            if i % 4 == 0:
                a(f"s_add_u32 m0, s{sA}, {lds + 1024 * i}")
                a(f"s_mov_b32 s{sT0}, {1024 * i}")
            if i == 10: a("s_mov_b64 exec, 0xff")
            self.dma(vM, srd, f"s{sT0}", 1024 * (i % 4))
        a("s_mov_b64 exec, -1")

    def loader(self):
        a = self.a; self.isC = False; self.inhelp = False
        vW, vW0, vT, vU, vN = 2, 3, 4, 5, 6
        fA = [8 + q for q in range(5)]; fB = [13 + q for q in range(5)]
        vA1, vA0, vM1, vM0, vMat = 18, 19, 20, 21, 22
        a(f"""
        v_lshlrev_b32 v{vMat}, 4, v0
        s_mul_i32 s{sA}, s{sLW}, 10368
        v_add_u32 v{vMat}, s{sA}, v{vMat}
        s_cmp_gt_u32 s{sROLE}, 8
        s_cbranch_scc1 L_lhelp
        """)
        a(f"""
        v_and_b32 v{vT}, 24, v0
        v_lshrrev_b32 v{vU}, 5, v0
        v_lshl_add_u32 v{vT}, v{vU}, 2, v{vT}
        v_bfe_u32 v{vU}, v0, 1, 2
        v_add_u32 v{vT}, v{vT}, v{vU}
        v_mul_u32_u24 v{vW}, 288, v{vT}
        v_and_b32 v{vU}, 1, v0
        v_lshl_add_u32 v{vW}, v{vU}, 4, v{vW}
        s_mul_i32 s{sT0}, s{sLW}, 82944
        s_lshl_b32 s{sT1}, s{sROLE}, 5
        s_add_u32 s{sT0}, s{sT0}, s{sT1}
        v_add_u32 v{vW}, s{sT0}, v{vW}
        v_subrev_u32 v{vW0}, 4608, v{vW}
        v_bfrev_b32 v1, 1
        v_cmp_gt_i32 vcc, 0, v{vW0}
        v_cndmask_b32 v{vW0}, v{vW0}, v1, vcc
        """)
        a(f"""
        s_mul_i32 s{sT0}, s{sGRP}, {R}
        s_sub_u32 s{sT0}, s{sT0}, 12
        v_lshrrev_b32 v{vU}, 3, v0
        v_add_u32 v{vU}, s{sT0}, v{vU}
        v_and_b32 v{vT}, 7, v0
        v_lshlrev_b32 v{vT}, 4, v{vT}
        s_lshl_b32 s{sT1}, s{sLW}, 3
        s_movk_i32 s{sB}, 1152
        s_movk_i32 s{sC}, 999
        """)
        def faddr(dst, q, plus):
            if q < 4:
                a(f"s_add_u32 s{sT2}, s{sT1}, {32 * q + plus}")
                a(f"v_add_u32 v{vN}, s{sT2}, v{vU}")
            else:
                a(f"v_add_u32 v{vN}, {128 + plus}, v{vU}")
            a(f"""
            v_cmp_lt_i32 vcc, s{sC}, v{vN}
            v_add_u32 v7, -8, v{vN}
            v_cndmask_b32 v7, v{vN}, v7, vcc
            v_cmp_lt_u32 s[{sEX}:{sEX+1}], s{sC}, v7
            v_mad_u32_u24 v{dst}, v7, s{sB}, v{vT}
            s_xor_b64 vcc, vcc, s[{sEX}:{sEX+1}]
            v_cndmask_b32 v{dst}, v{dst}, v1, vcc
            """)
        for q in range(5): faddr(fA[q], q, 0)
        a(f"""
        s_lshl_b32 s{sD}, s{sLW}, 4
        s_mul_i32 s{sT3}, s{sLW}, 1056
        s_lshl_b32 s{sR}, s{sLW}, 10
        s_waitcnt lgkmcnt(0)
        """)
        sX17 = sC1
        a(f"s_mov_b64 s[{sX17}:{sX17+1}], 0xffff")
        a(f"s_lshl_b64 s[{sX17}:{sX17+1}], s[{sX17}:{sX17+1}], s{sD}")
        sLX, sLWk = sC2, sR
        a(f"s_mov_b32 s{sLX}, s{sT3}")
        def xitem(l, slot):
            regs = fA if l <= 6 else fB
            a(f"s_movk_i32 s{sT0}, {256 + 128 * l if l <= 6 else 128 * (l - 7)}")
            for q in range(4):
                a(f"s_add_u32 m0, s{sLX}, {slot + 1056 * 4 * q}")
                self.dma(regs[q], SX, f"s{sT0}")
            a(f"s_mov_b32 m0, {slot + 1056 * 16}")
            a(f"s_mov_b64 exec, s[{sX17}:{sX17+1}]")
            self.dma(regs[4], SX, f"s{sT0}")
            a("s_mov_b64 exec, -1")
        def wstep(r):
            for q in range(4):
                a(f"s_add_u32 m0, s{sLWk}, {WSLOT[r % 3] + 4096 * q}")
                if q == 0 and r == 0:
                    self.dma(vW0, SW1, "0")
                else:
                    a(f"s_mov_b32 s{sT0}, {331776 * q + 9216 * r - 4608}")
                    self.dma(vW, SW1, f"s{sT0}")
        def step(r):
            if r < 8: xitem(ITEM[r], XSL[r % 4])
            if r == 0: xitem(4, XL4)
            wstep(r)
        self.stamp(0)
        step(0); step(1); self.stamp(25)
        a(f"s_lshl_b32 s{sT1}, s{sLW}, 3")
        for q in range(5): faddr(fB[q], q, 1)
        a(f"""
        s_mul_i32 s{sT0}, s{sROLE}, 4608
        s_mul_i32 s{sT1}, s{sLW}, 82944
        s_add_u32 s{sT0}, s{sT0}, s{sT1}
        v_lshlrev_b32 v{vA1}, 4, v0
        v_add_u32 v{vA1}, s{sT0}, v{vA1}
        v_lshrrev_b32 v{vT}, 5, v0
        v_mul_u32_u24 v{vT}, {41472 - 4608}, v{vT}
        v_add_u32 v{vM1}, 4096, v{vA1}
        v_add_u32 v{vM1}, v{vT}, v{vM1}
        v_subrev_u32 v{vA0}, 41472, v{vA1}
        v_subrev_u32 v{vM0}, 41472, v{vM1}
        s_cmp_eq_u32 s{sLW}, 0
        s_cselect_b64 vcc, -1, 0
        v_cndmask_b32 v{vA0}, v{vA0}, v1, vcc
        s_mov_b32 vcc_hi, 0
        v_cndmask_b32 v{vM0}, v{vM0}, v1, vcc
        s_mul_i32 s{sB}, s{sLW}, 9216
        """)
        def w2grp(g):
            if g: a(f"s_mov_b32 s{sT0}, {g * 331776 - 41472}")
            so = f"s{sT0}" if g else "0"
            a(f"s_add_u32 m0, s{sB}, {36864 * g}")
            for i in range(4): self.dma(vA1 if g else vA0, SW2, so, 1024 * i)
            a(f"s_add_u32 m0, s{sB}, {36864 * g + 4096}")
            self.dma(vM1 if g else vM0, SW2, so)
            a(f"s_add_u32 m0, s{sB}, {36864 * g + 5120}")
            a(f"s_mov_b32 s{sT0}, {g * 331776 + 512}")
            for i in range(4): self.dma(vA1, SW2, f"s{sT0}", 1024 * i)
        a("s_waitcnt vmcnt(9)"); self.stamp(1); a("s_barrier")
        step(2)
        bar = "s_nop 0" if "nobar" in self.o else "s_barrier"
        for r in range(1, 7):
            a("s_waitcnt vmcnt(9)"); self.stamp(10 + r); a(bar)
            if "nodma" not in self.o: step(r + 2)
            self.stamp(25 + r)
        a("s_waitcnt vmcnt(4)"); self.stamp(17); a(bar)
        if "nobar" in self.o: a("s_waitcnt vmcnt(0)"); self.stamp(10)
        w2grp(0)
        a("s_waitcnt vmcnt(9)"); self.stamp(18); a(bar)
        w2grp(1)
        a("s_waitcnt vmcnt(9)"); self.stamp(19); a("s_barrier")
        a("s_waitcnt vmcnt(0)"); self.stamp(20); a("s_barrier")
        w2grp(2); w2grp(3)
        a("s_waitcnt vmcnt(9)"); self.stamp(21); a("s_barrier")
        self.load_mat(SWF, LWF, vMat)
        a("s_waitcnt vmcnt(11)"); self.stamp(22); a("s_barrier")
        self.load_mat(SWO, LWO, vMat)
        a("s_branch L_lcommon")
        a("L_lhelp:")
        self.inhelp = True; self.prefetch(); self.inhelp = False
        a(f"s_cmp_lg_u32 s{sROLE}, 9")
        a("s_cbranch_scc1 L_lhelp2")
        self.load_mat(SWG, LWG, vMat)
        a("L_lhelp2:")
        a("s_waitcnt vmcnt(0)\ns_barrier")
        if "nohw" not in self.o:
            self.load_mat(SWF, LWF, vMat)
            self.load_mat(SWO, LWO, vMat)
        a("L_lcommon:")
        a(f"""
        s_cmp_lg_u32 s{sLW}, 0
        s_cbranch_scc1 L_nochk
        s_lshl_b32 s{sT0}, s{sGRP}, 2
        s_mov_b32 s{sT1}, 0
        L_chk:
        buffer_load_dword v1, off, s[{SDBG}:{SDBG+3}], s{sT0} sc1
        s_add_u32 s{sT1}, s{sT1}, 1
        s_waitcnt vmcnt(0)
        v_readfirstlane_b32 s{sT2}, v1
        s_cmp_lg_u32 s{sT2}, 0
        s_cbranch_scc1 L_nochk
        s_cmp_lt_u32 s{sT1}, 0x40000
        s_cbranch_scc1 L_chk
        L_nochk:
        """)
        a("s_waitcnt vmcnt(0)"); self.stamp(2); a("s_barrier")
        self.loader_p2()

    def prefetch(self):
        a = self.a
        sX, sCU = sB, sC
        a(f"""
        s_and_b32 s{sX}, s2, 7
        s_mul_i32 s{sCU}, s{sGRP}, 5
        s_add_u32 s{sCU}, s{sCU}, s{sROLE}
        s_mul_i32 s{sT0}, s{sX}, 11
        s_cmp_gt_u32 s{sX}, 2
        s_addc_u32 s{sT0}, s{sT0}, 9
        s_sub_u32 s{sCU}, s{sCU}, s{sT0}
        v_bfrev_b32 v1, 1
        s_cmp_gt_u32 s{sCU}, 10
        s_cselect_b32 s{sT0}, 3, s{sLW}
        s_cmp_eq_u32 s{sT0}, 3
        s_waitcnt lgkmcnt(0)
        s_cbranch_scc1 L_pfd
        """)
        if "nopf" in self.o: a("s_branch L_pfd")
        self.stamp(0)
        a(f"""
        s_cmp_eq_u32 s{sLW}, 2
        s_cbranch_scc1 L_pfx
        s_mul_i32 s{sT0}, s{sCU}, 105
        s_lshl_b32 s{sT1}, s{sLW}, 6
        v_add_u32 v3, s{sT1}, v0
        v_add_u32 v2, s{sT0}, v3
        v_mul_u32_u24 v4, 911, v2
        v_lshrrev_b32 v4, 16, v4
        v_mul_u32_u24 v4, {82944 - 72 * 128}, v4
        v_lshl_add_u32 v2, v2, 7, v4
        v_cmp_gt_u32 vcc, 105, v3
        v_cndmask_b32 v2, v1, v2, vcc
        v_subrev_u32 v3, 4608, v2
        buffer_load_dword v5, v3, s[{SW1}:{SW1+3}], 0 offen
        """)
        pw = [int(x[2:]) for x in self.o if x.startswith("pw")]
        pw = pw[0] if pw else 99
        for r in range(1, 9):
            a(f"s_mov_b32 s{sT0}, {9216 * r - 4608}")
            if r >= pw: a(f"s_waitcnt vmcnt({pw - 1})")
            a(f"buffer_load_dword v5, v2, s[{SW1}:{SW1+3}], s{sT0} offen")
        a(f"""
        s_branch L_pfw2
        L_pfx:
        s_mul_i32 s{sT0}, s{sX}, 9
        s_lshr_b32 s{sT0}, s{sT0}, 2
        s_mul_i32 s{sT0}, s{sT0}, {R}
        s_cmp_gt_u32 s{sX}, 3
        s_cselect_b32 s{sT1}, 20, 12
        s_sub_u32 s{sT0}, s{sT0}, s{sT1}
        s_cmp_eq_u32 s{sX}, 3
        s_cselect_b32 s{sT1}, 43, 33
        s_mul_i32 s{sT2}, s{sT1}, s{sCU}
        s_add_u32 s{sT0}, s{sT0}, s{sT2}
        s_mul_i32 s{sT0}, s{sT0}, 1152
        v_mul_u32_u24 v2, 1152, v0
        v_add_u32 v2, s{sT0}, v2
        v_cmp_gt_u32 vcc, s{sT1}, v0
        v_cndmask_b32 v2, v1, v2, vcc
        """)
        for n, l in enumerate((0, 4, 5, 1, 6, 2, 7, 3, 8)):
            if n > pw: a(f"s_waitcnt vmcnt({pw - 1})")
            a(f"buffer_load_dword v5, v2, s[{SX}:{SX+3}], 0 offen offset:{256 + 128 * l}")
        a(f"""
        L_pfw2:
        s_mul_i32 s{sT0}, s{sLW}, 11
        s_add_u32 s{sT0}, s{sT0}, s{sCU}
        s_lshl_b32 s{sT0}, s{sT0}, 13
        v_lshlrev_b32 v2, 7, v0
        """)
        self.stamp(5)
        if self.dev and not self.lite: a("s_waitcnt vmcnt(8)"); self.stamp(6); a("s_waitcnt vmcnt(0)"); self.stamp(7)
        for i in range(0 if "nop2" in self.o else 5):
            if i: a(f"s_add_u32 s{sT0}, s{sT0}, {33 * 8192}")
            if pw < 9: a(f"s_waitcnt vmcnt({pw - 1})")
            a(f"buffer_load_dword v5, v2, s[{SW2}:{SW2+3}], s{sT0} offen")
        self.stamp(8)
        if self.dev: a("s_waitcnt vmcnt(0)"); self.stamp(9)
        a("L_pfd:")

    def gelu4(self, x, t, one):
        a = self.a
        o = vr(one, 2) if one is not None else "1.0"
        for h in (0, 2): a(f"v_pk_mul_f32 {vr(t+h,2)}, {vr(x+h,2)}, {vr(x+h,2)}")
        for h in (0, 2): a(f"v_pk_fma_f32 {vr(t+h,2)}, {vr(t+h,2)}, s[{sC2}:{sC2+1}], {vr(self.vC1,2)}")
        for h in (0, 2): a(f"v_pk_mul_f32 {vr(t+h,2)}, {vr(t+h,2)}, {vr(x+h,2)}")
        for h in range(4): a(f"v_exp_f32 v{t+h}, v{t+h}")
        for h in (0, 2):
            if one is None: a(f"v_pk_add_f32 {vr(t+h,2)}, {vr(t+h,2)}, 1.0 op_sel_hi:[1,0]")
            else: a(f"v_pk_add_f32 {vr(t+h,2)}, {vr(t+h,2)}, {o}")
        for h in range(4): a(f"v_rcp_f32 v{t+h}, v{t+h}")
        for h in (0, 2): a(f"v_pk_mul_f32 {vr(x+h,2)}, {vr(x+h,2)}, {vr(t+h,2)}")

    def gather(self, vo, P, T):
        a = self.a
        a(f"s_mul_i32 s{sT0}, s{sGRP}, {MB}")
        a(f"s_add_u32 s{sT0}, s{sT0}, s{sROLE}")
        a(f"s_mul_i32 s{sT0}, s{sT0}, {9 * UNIT}")
        for n in range(9):
            if n and n % 2 == 0: a(f"s_add_u32 s{sT0}, s{sT0}, {2 * UNIT}")
            o = f" offset:{UNIT}" if n % 2 else ""
            a(f"buffer_load_dwordx2 {vr(P+2*n,2)}, v{vo}, s[{SWS}:{SWS+3}], s{sT0} offen{o} sc1")
        a(f"s_mov_b32 s{sC2}, {hx(f2u(C2))}\ns_mov_b32 s{sC2+1}, {hx(f2u(C2))}")
        a(f"v_mov_b32 v{self.vC1}, {hx(f2u(C1))}\nv_mov_b32 v{self.vC1+1}, {hx(f2u(C1))}")
        a(f"s_mov_b32 s{sT1}, 0xffff0000")
        for n in range(9):
            a(f"s_waitcnt vmcnt({8-n})")
            if self.isC and n in (0, 8): self.cyc(1 if n == 0 else 2)
            d = T if n == 0 else T + 4
            for h in (0, 1):
                a(f"v_lshlrev_b32 v{d+2*h}, 16, v{P+2*n+h}")
                a(f"v_and_b32 v{d+2*h+1}, s{sT1}, v{P+2*n+h}")
            if n:
                for h in (0, 2): a(f"v_pk_add_f32 {vr(T+h,2)}, {vr(T+h,2)}, {vr(T+4+h,2)}")
        self.gelu4(T, T + 4, None)
        a(f"v_cvt_pk_bf16_f32 v{T}, v{T}, v{T+1}")
        a(f"v_cvt_pk_bf16_f32 v{T+1}, v{T+2}, v{T+3}")
        a(f"v_add_u32 v{vo}, {FB}, v{vo}")
        a(f"ds_write_b64 v{vo}, {vr(T,2)}")

    def loader_p2(self):
        a = self.a
        WO = 94
        GEr = 58
        ACC = 20
        Fb = 4
        vAd, vO = 2, 3
        self.vC1 = 56
        a(f"""
        v_lshrrev_b32 v{vAd}, 2, v0
        v_mul_u32_u24 v{vAd}, 288, v{vAd}
        v_and_b32 v1, 3, v0
        v_lshl_add_u32 v{vO}, v1, 3, v{vAd}
        v_lshl_add_u32 v{vAd}, v1, 4, v{vAd}
        v_add_u32 v{vO}, {LWO}, v{vO}
        v_add_u32 v{vAd}, {LWO}, v{vAd}
        """)
        n = 0
        for c in range(5):
            for t in range(9):
                for h in range(2 if c < 4 else 1):
                    ro = (32 * c + 16 * h) * 288
                    d = WO + 36 * c + 4 * t + 2 * h if c < 4 else WO + 144 + 2 * t
                    if t < 8: a(f"ds_read_b64_tr_b16 {vr(d,2)}, v{vAd} offset:{ro + 64 * (t >> 1) + 8 * (t & 1)}")
                    else: a(f"ds_read_b64_tr_b16 {vr(d,2)}, v{vO} offset:{ro + 256}")
        a(f"""
        v_lshrrev_b32 v1, 4, v0
        v_lshlrev_b32 v{vAd}, 8, v1
        v_bfe_u32 v{Fb}, v0, 3, 1
        s_lshl_b32 s{sT0}, s{sLW}, 1
        v_add_u32 v{Fb}, s{sT0}, v{Fb}
        v_lshl_add_u32 v{vAd}, v{Fb}, 4, v{vAd}
        s_cmp_gt_u32 s{sGRP}, 8
        s_cselect_b32 s{sT1}, 128, 0
        s_cselect_b32 s{sT2}, 8, 0
        s_cselect_b32 s{sT3}, -1, 1000
        s_mul_i32 s{sB}, s{sGRP}, 9216
        s_add_u32 s{sB}, s{sB}, s{sT1}
        s_add_u32 s{sB}, s{sB}, {GE_OFF}
        """)
        a(f"""
        s_mul_i32 s{sT0}, s{sGRP}, {R}
        s_lshr_b32 s{sT1}, s{sROLE}, 1
        s_add_u32 s{sT0}, s{sT0}, s{sT1}
        s_and_b32 s{sT1}, s{sROLE}, 1
        s_mul_i32 s{sT1}, s{sT1}, 56
        s_add_u32 s{sT0}, s{sT0}, s{sT1}
        s_sub_u32 s{sT0}, s{sT0}, s{sT2}
        v_and_b32 v{Fb+1}, 7, v0
        v_mad_u32_u24 v{Fb+2}, v{Fb+1}, 7, s{sT0}
        v_cmp_gt_u32 vcc, s{sT3}, v{Fb+2}
        v_lshl_add_u32 v{Fb+2}, v{Fb+2}, 3, v{Fb}
        v_mul_u32_u24 v{Fb+2}, 288, v{Fb+2}
        v_lshl_add_u32 v{Fb+2}, v1, 3, v{Fb+2}
        v_bfrev_b32 v{Fb+3}, 1
        v_cndmask_b32 v{vO}, v{Fb+3}, v{Fb+2}, vcc
        """)
        a("s_waitcnt lgkmcnt(0)")
        a("s_barrier")
        for t in range(9):
            if t == 4 or t == 8: a(f"s_add_u32 s{sB}, s{sB}, 4096")
            o = f" offset:{1024 * (t % 4)}" if t % 4 else ""
            a(f"buffer_load_dwordx4 {vr(GEr+4*t,4)}, v{vAd}, s[{SWS}:{SWS+3}], s{sB} offen{o} sc1")
        a(f"s_cmp_lg_u32 s{sLW}, 0")
        a("s_cbranch_scc1 L_nog")
        a("s_mov_b32 exec_hi, 0")
        a(f"v_lshlrev_b32 v{Fb+4}, 3, v0")
        a(f"v_add_u32 v{Fb+4}, 2048, v{Fb+4}")
        self.gather(Fb + 4, ACC, ACC + 18)
        a("s_mov_b64 exec, -1")
        a("s_waitcnt lgkmcnt(0)")
        a("L_nog:")
        a(f"""
        v_lshlrev_b32 v{vAd}, 7, v1
        v_lshl_add_u32 v{vAd}, v{Fb+1}, 4, v{vAd}
        v_add_u32 v{vAd}, {FE}, v{vAd}
        v_lshl_add_u32 v1, v1, 3, v{vO}
        s_barrier
        s_waitcnt vmcnt(0)
        s_barrier
        """)
        self.stamp(3)
        def rd(c):
            b = Fb + 8 * (c & 1)
            a(f"ds_read_b128 {vr(b,4)}, v{vAd} offset:{1024 * c}")
            if c < 4: a(f"ds_read_b128 {vr(b+4,4)}, v{vAd} offset:{1024 * c + 512}")
        rd(0); rd(1)
        for c in range(5):
            b = Fb + 8 * (c & 1); nv = 8 if c < 4 else 4
            a(f"s_waitcnt lgkmcnt({0 if c == 4 else (1 if c == 3 else 2)})")
            ge = GEr + 8 * c
            for h in range(0, nv, 2): a(f"v_pk_add_f32 {vr(ge+h,2)}, {vr(ge+h,2)}, {vr(b+h,2)}")
            if c + 2 <= 4: rd(c + 2)
            for h in range(nv): a(f"v_exp_f32 v{ge+h}, v{ge+h}")
            for h in range(0, nv, 2): a(f"v_pk_add_f32 {vr(ge+h,2)}, {vr(ge+h,2)}, 1.0 op_sel_hi:[1,0]")
            for h in range(nv): a(f"v_rcp_f32 v{ge+h}, v{ge+h}")
            for h in range(0, nv, 2): a(f"v_pk_fma_f32 {vr(ge+h,2)}, {vr(ge+h,2)}, -2.0, 1.0 op_sel_hi:[1,0,0]")
            for h in range(0, nv, 2): a(f"v_cvt_pk_bf16_f32 v{ge+h//2}, v{ge+h}, v{ge+h+1}")
            for t in range(9):
                cc = "0" if c == 0 else vr(ACC + 4 * t, 4)
                if c < 4: a(f"v_mfma_f32_16x16x32_bf16 {vr(ACC+4*t,4)}, {vr(WO+36*c+4*t,4)}, {vr(ge,4)}, {cc}")
                else: a(f"v_mfma_f32_16x16x16_bf16 {vr(ACC+4*t,4)}, {vr(WO+144+2*t,2)}, {vr(ge,2)}, {cc}")
        for cp in range(4):
            s = ACC + 8 * cp; d = Fb + 4 * cp
            for h in range(4): a(f"v_cvt_pk_bf16_f32 v{d+h}, v{s+2*h}, v{s+2*h+1}")
            o = f" offset:{64 * cp}" if cp else ""
            a(f"buffer_store_dwordx4 {vr(d,4)}, v1, s[{SOUT}:{SOUT+3}], 0 offen{o}")
        s = ACC + 32
        for h in range(2): a(f"v_cvt_pk_bf16_f32 v{GEr+h}, v{s+2*h}, v{s+2*h+1}")
        a(f"buffer_store_dwordx2 {vr(GEr,2)}, v{vO}, s[{SOUT}:{SOUT+3}], 0 offen offset:256")
        if self.dev:
            a("s_waitcnt vmcnt(0)"); self.stamp(4); self.dump()
        if self.diag:
            self.stamp(4)
            a(f"""
            s_cmp_gt_u32 s{sROLE}, 8
            s_cbranch_scc1 L_dgend
            s_memrealtime s[94:95]
            s_waitcnt lgkmcnt(0)
            s_sub_u32 s96, s96, s98
            s_lshl_b32 s96, s96, 1
            s_min_u32 s96, s96, 20000
            L_dg:
            s_memrealtime s[92:93]
            s_waitcnt lgkmcnt(0)
            s_sub_u32 s92, s92, s94
            s_cmp_lt_u32 s92, s96
            s_cbranch_scc1 L_dg
            L_dgend:
            """)
        a("s_endpgm")

    def dump(self):
        a = self.a
        a(f"s_lshl_b32 s{sT0}, s2, 3\ns_add_u32 s{sT0}, s{sT0}, s{sWAVE}\ns_lshl_b32 s{sT0}, s{sT0}, 8\ns_add_u32 s{sT0}, s{sT0}, {STAMP_OFF}")
        if not self.isC:
            for i in range(36): a(f"v_writelane_b32 v255, s{64+i}, {i}")
        a("v_writelane_b32 v255, s3, 61")
        a("s_getreg_b32 s3, hwreg(HW_REG_HW_ID)\nv_writelane_b32 v255, s3, 60\ns_getreg_b32 s3, hwreg(HW_REG_XCC_ID)\nv_writelane_b32 v255, s3, 59")
        a(f"v_writelane_b32 v255, s{sGRP}, 62\nv_writelane_b32 v255, s{sROLE}, 63")
        a(f"v_lshlrev_b32 v1, 2, v0\nbuffer_store_dword v255, v1, s[{SWS}:{SWS+3}], s{sT0} offen")

    def afrags(self, dst, vad, vad8, base):
        a = self.a
        for c in range(5):
            for t in range(3):
                for h in range(2 if c < 4 else 1):
                    ro = base + (32 * c + 16 * h) * 288
                    d = dst + 12 * c + 4 * t + 2 * h if c < 4 else dst + 48 + 2 * t
                    if t < 2: a(f"ds_read_b64_tr_b16 {vr(d,2)}, v{vad} offset:{ro + 32 * t}")
                    else: a(f"ds_read_b64_tr_b16 {vr(d,2)}, v{vad8} offset:{ro + 256}")

    def smallgemm(self, acc, A, B):
        a = self.a
        for c in range(5):
            for t in range(3):
                cc = "0" if c == 0 else vr(acc + 4 * t, 4)
                if c < 4: a(f"v_mfma_f32_16x16x32_bf16 {vr(acc+4*t,4)}, {vr(A+12*c+4*t,4)}, {vr(B+4*c,4)}, {cc}")
                else: a(f"v_mfma_f32_16x16x16_bf16 {vr(acc+4*t,4)}, {vr(A+48+2*t,2)}, {vr(B+16,2)}, {cc}")
        a(f"s_mov_b32 s{sC1}, {hx(f2u(K2))}\ns_mov_b32 s{sC1+1}, {hx(f2u(K2))}")
        for h in range(0, 12, 2): a(f"v_pk_mul_f32 {vr(acc+h,2)}, {vr(acc+h,2)}, s[{sC1}:{sC1+1}]")

    def compute(self):
        a = self.a; self.isC = True
        aE = [2, 3, 4, 5]; aO = [6, 7, 8, 9]; cst = [10, 11, 12, 13]; aW = 14; l8 = 15
        ACC = 16; W = 32; X = 96
        vJ, vG = 172, 173
        vT8, vTw = 174, 175
        a("L_cw:")
        a(f"""
        v_and_b32 v{vJ}, 15, v0
        v_lshrrev_b32 v{vG}, 4, v0
        v_lshrrev_b32 v{vT8}, 2, v0
        v_mul_u32_u24 v{vT8}, 288, v{vT8}
        v_and_b32 v1, 3, v0
        v_lshl_add_u32 v{vT8}, v1, 3, v{vT8}
        s_lshl_b32 s{sT0}, s{sLW}, 6
        v_add_u32 v{vTw}, s{sT0}, v{vT8}
        s_cmp_gt_u32 s{sROLE}, 8
        s_cbranch_scc1 L_chelp
        v_lshlrev_b32 v{l8}, 3, v0
        v_mul_u32_u24 v{cst[0]}, 1056, v{vJ}
        v_lshl_add_u32 v{cst[0]}, v{vG}, 4, v{cst[0]}
        s_lshl_b32 s{sT0}, s{sLW}, 8
        v_add_u32 v{cst[0]}, s{sT0}, v{cst[0]}
        """)
        for c in (1, 2, 3):
            a(f"s_cmp_ge_u32 s{sLW}, {4 - c}\ns_cselect_b32 s{sT0}, 32, 0\nv_add_u32 v{cst[c]}, s{sT0}, v{cst[0]}")
        for r in range(1, 9):
            a(f"s_mov_b32 s{sTAB+r}, {EVEN[r]}\ns_mov_b32 s{sTAB+9+r}, {ODD[r]}\ns_mov_b32 s{sTAB+18+r}, {WSLOT[r%3]}")
        for c in range(4):
            a(f"v_add_u32 v{aE[c]}, {EVEN[0]}, v{cst[c]}\nv_add_u32 v{aO[c]}, {ODD[0]}, v{cst[c]}")
        a(f"v_add_u32 v{aW}, {WSLOT[0]}, v{l8}")
        for i in range(16): a(f"v_mov_b32 v{ACC+i}, 0")
        a(f"s_mov_b32 s{sR}, 0")
        def rdX(u):
            d = u >> 1; cl = (d >> 1) & 3
            off = 128 * d + (32 if d >= 8 else 0)
            return f"ds_read_b128 {vr(X+4*u,4)}, v{(aO if u & 1 else aE)[cl]} offset:{off}"
        def rdW(m, h): return f"ds_read_b64_tr_b16 {vr(W+4*m+2*h,2)}, v{aW} offset:{1024*m+512*h}"
        def Gm(m): return [rdW(m, 0), rdW(m, 1), rdX(m + 3)]
        first = [rdX(0), rdX(1), rdX(2)] + Gm(0) + Gm(1) + Gm(2) + Gm(3)
        def mf(m, i): return f"v_mfma_f32_16x16x32_bf16 {vr(ACC+4*i,4)}, {vr(W+4*m,4)}, {vr(X+4*(m+i),4)}, {vr(ACC+4*i,4)}"
        def inter(mfs, fill):
            n = len(mfs); k = 0
            for i, x in enumerate(mfs):
                a(x)
                upto = (len(fill) * (i + 1) + n - 1) // n
                while k < upto: a(fill[k]); k += 1
        a("s_waitcnt lgkmcnt(0)")
        self.stamp(0)
        a("s_barrier")
        self.stamp(1, 8)
        for x in first: a(x)
        a("L_c1:")
        for m in range(13):
            a("s_waitcnt lgkmcnt(9)")
            if m < 12: fill = Gm(m + 4)
            else:
                fill = [f"v_add_u32 v{aW}, s{sC}, v{l8}"]
                for c in range(4): fill += [f"v_add_u32 v{aE[c]}, s{sA}, v{cst[c]}", f"v_add_u32 v{aO[c]}, s{sB}, v{cst[c]}"]
            if m == 10: fill = fill + [f"s_add_u32 s{sR}, s{sR}, 1", f"s_min_u32 m0, s{sR}, 8"]
            if m == 11: fill = fill + [f"s_movrels_b32 s{sA}, s{sTAB}", f"s_movrels_b32 s{sB}, s{sTAB+9}", f"s_movrels_b32 s{sC}, s{sTAB+18}"]
            inter([mf(m, i) for i in range(4)], fill)
        if self.dev: a(f"s_add_u32 s{sT0}, s{sR}, 10")
        a(f"s_cmp_eq_u32 s{sR}, 9")
        a("s_waitcnt lgkmcnt(0)"); self.stamp(f"s{sT0}"); a("s_nop 0" if "nobar" in self.o else "s_barrier")
        a("s_cbranch_scc1 L_c1tail")
        inter([mf(m, i) for m in (13, 14) for i in range(4)], first)
        a(f"s_cmp_gt_u32 s{sR}, 5")
        a("s_cbranch_scc1 L_c1")
        for i in range(4): a(mf(15, i))
        a("s_branch L_c1")
        a("L_c1tail:")
        if self.lite and "cyc" not in self.o: self.stamp(19)
        self.cyc(0)
        if "nobar" in self.o: a("s_barrier")
        W2 = 176
        HE = 200
        vHa, vHe = 216, 217
        vOne = 218
        self.vC1 = 220
        vW2a, vW2b = 222, 223
        TMP = 224
        A2 = 32
        H = 96
        def rdW2(k):
            b = W2 + 12 * (k & 1); o = 9216 * (k % 7)
            return [f"ds_read_b64_tr_b16 {vr(b+4*t+2*h,2)}, v{vW2a if t < 2 else vW2b} offset:{o + 4608*h + (32*t if t < 2 else 256)}"
                    for t in range(3) for h in range(2)]
        pre = [f"v_mov_b32 v{vW2a}, v{vTw}", f"v_mov_b32 v{vW2b}, v{vT8}"] + rdW2(0)
        pre += [f"s_mul_i32 s{sT0}, s{sGRP}, 14", f"s_sub_u32 s{sT0}, s{sT0}, 1", f"v_add_u32 v1, s{sT0}, v{vJ}",
                f"s_movk_i32 s{sT1}, 251", f"s_movk_i32 s{sT2}, 125",
                f"v_cmp_gt_u32 vcc, s{sT1}, v1", f"v_cmp_ne_u32 s[{sEX}:{sEX+1}], s{sT2}, v1",
                f"v_mov_b32 v{vOne}, 0x7f800000", f"s_and_b64 vcc, vcc, s[{sEX}:{sEX+1}]",
                f"v_mov_b32 v{self.vC1}, {hx(f2u(C1))}", f"v_mov_b32 v{self.vC1+1}, {hx(f2u(C1))}",
                f"v_cndmask_b32 v{vOne}, v{vOne}, 1.0, vcc",
                f"s_mov_b32 s{sC2}, {hx(f2u(C2))}", f"s_mov_b32 s{sC2+1}, {hx(f2u(C2))}",
                f"v_mov_b32 v{vOne+1}, v{vOne}"]
        inter([mf(m, i) for m in (13, 14) for i in range(4)], pre)
        a(f"""
        v_lshlrev_b32 v{vHa}, 11, v{vG}
        v_add_u32 v{vHa}, {HB}, v{vHa}
        s_lshl_b32 s{sT0}, s{sLW}, 5
        v_lshl_add_u32 v1, v{vJ}, 7, v{vHa}
        v_add_u32 v1, s{sT0}, v1
        v_mul_u32_u24 v{vHe}, 112, v{vJ}
        v_add_u32 v{vHa}, v{vHe}, v{vHa}
        v_add_u32 v{vHe}, s{sT0}, v{vHa}
        """)
        self.cyc(1)
        for i in range(4):
            self.gelu4(ACC + 4 * i, TMP + 4 * (i & 1), vOne)
            d = TMP + 8 + 4 * (i >> 1) + 2 * (i & 1)
            a(f"v_cvt_pk_bf16_f32 v{d}, v{ACC+4*i}, v{ACC+4*i+1}")
            a(f"v_cvt_pk_bf16_f32 v{d+1}, v{ACC+4*i+2}, v{ACC+4*i+3}")
            if i & 1: a(f"ds_write_b128 v1, {vr(TMP+8+4*(i>>1),4)} offset:{16*(i>>1)}")
        self.cyc(2)
        a("s_waitcnt lgkmcnt(0)")
        self.cyc(3); self.cycflush(40, 4)
        self.stamp(2)
        a("s_barrier")
        def rdH(q): return f"ds_read_b128 {vr(H+4*(q%16),4)}, v{vHa} offset:{16*q}"
        def rdE(q): return f"ds_read_b128 {vr(HE+4*(q%4),4)}, v{vHe} offset:{16*q}"
        for q in range(7): a(rdH(q))
        a(rdE(0)); a(rdE(1))
        for k in range(16):
            b = W2 + 12 * (k & 1)
            mfs = []
            for rho in range(7):
                for t in range(2):
                    d = A2 + 8 * rho + 4 * t
                    mfs.append(f"v_mfma_f32_16x16x32_bf16 {vr(d,4)}, {vr(b+4*t,4)}, {vr(H+4*((rho+k)%16),4)}, {vr(d,4) if k else 0}")
            for e in range(2):
                d = A2 + 56 + 4 * e
                mfs.append(f"v_mfma_f32_16x16x32_bf16 {vr(d,4)}, {vr(b+8,4)}, {vr(HE+4*((e+k)%4),4)}, {vr(d,4) if k else 0}")
            fill = []
            if k < 15:
                if (k + 1) % 7 == 0: fill += [f"v_add_u32 v{vW2a}, {7*9216}, v{vW2a}", f"v_add_u32 v{vW2b}, {7*9216}, v{vW2b}"]
                fill += rdW2(k + 1) + [rdH(k + 7), rdE(k + 2)]
            a("s_waitcnt lgkmcnt(0)")
            if k in (7, 11): self.stamp(21 if k == 7 else 22); a("s_barrier")
            inter(mfs[:10], fill)
            for x in mfs[10:]: a(x)
        a(f"""
        v_lshrrev_b32 v1, 3, v{vJ}
        v_mul_u32_u24 v1, {9*UNIT}, v1
        v_and_b32 v2, 7, v{vJ}
        v_lshl_add_u32 v2, v{vG}, 3, v2
        v_lshl_add_u32 v3, v2, 3, v1
        v_lshl_add_u32 v2, v2, 4, v1
        s_mul_i32 s{sA}, s{sGRP}, {MB*9}
        s_add_u32 s{sA}, s{sA}, s{sROLE}
        s_mul_i32 s{sA}, s{sA}, {UNIT}
        s_mul_i32 s{sB}, s{sLW}, {4*9*UNIT}
        s_add_u32 s{sB}, s{sB}, s{sA}
        s_add_u32 s{sC}, s{sB}, {2*9*UNIT}
        s_cmp_eq_u32 s{sLW}, 3
        s_cselect_b32 s{sC}, 0x8000000, s{sC}
        s_lshl_b32 s{sT0}, s{sLW}, 9
        s_add_u32 s{sA}, s{sA}, s{sT0}
        """)
        for rho in range(7):
            s = A2 + 8 * rho; d = TMP + 4 * (rho & 3)
            for h in range(4): a(f"v_cvt_pk_bf16_f32 v{d+h}, v{s+2*h}, v{s+2*h+1}")
            if rho: a(f"s_add_u32 s{sA}, s{sA}, {2*9*UNIT}")
            a(f"buffer_store_dwordx4 {vr(d,4)}, v2, s[{SWS}:{SWS+3}], s{sA} offen sc1")
        for e in range(2):
            s = A2 + 56 + 4 * e; d = A2 + 2 * e
            for h in range(2): a(f"v_cvt_pk_bf16_f32 v{d+h}, v{s+2*h}, v{s+2*h+1}")
            a(f"buffer_store_dwordx2 {vr(d,2)}, v3, s[{SWS}:{SWS+3}], s{sB if e == 0 else sC} offen offset:2048 sc1")
        self.stamp(3, 9)
        a("s_branch L_ccommon")
        AF = 32; BF = 96; AC = 16
        a("L_chelp:")
        a(f"s_cmp_lg_u32 s{sROLE}, 9")
        a("s_waitcnt lgkmcnt(0)")
        a("s_cbranch_scc1 L_chelp2")
        a(f"v_mul_u32_u24 v1, 288, v{vJ}\nv_lshl_add_u32 v1, v{vG}, 3, v1")
        for t in range(9): a(f"buffer_load_dwordx2 {vr(BF+2*t,2)}, v1, s[{SG}:{SG+3}], 0 offen offset:{32*t}")
        a(f"v_add_u32 v2, {LWG}, v{vTw}\nv_add_u32 v3, {LWG}, v{vT8}")
        a("s_barrier")
        self.afrags(AF, 2, 3, 0)
        a("s_waitcnt vmcnt(0) lgkmcnt(0)")
        self.smallgemm(AC, AF, BF)
        a(f"""
        v_lshlrev_b32 v1, 4, v0
        s_mul_i32 s{sA}, s{sGRP}, 9216
        s_add_u32 s{sA}, s{sA}, {GE_OFF}
        s_add_u32 s{sB}, s{sA}, 8192
        s_lshl_b32 s{sT0}, s{sLW}, 11
        s_add_u32 s{sA}, s{sA}, s{sT0}
        s_cmp_eq_u32 s{sLW}, 0
        s_cselect_b32 s{sB}, s{sB}, 0x8000000
        buffer_store_dwordx4 {vr(AC,4)}, v1, s[{SWS}:{SWS+3}], s{sA} offen sc1
        buffer_store_dwordx4 {vr(AC+4,4)}, v1, s[{SWS}:{SWS+3}], s{sA} offen offset:1024 sc1
        buffer_store_dwordx4 {vr(AC+8,4)}, v1, s[{SWS}:{SWS+3}], s{sB} offen sc1
        s_branch L_ccommon
        L_chelp2:
        s_lshl_b32 s{sT0}, s{sWAVE}, 4
        s_add_u32 s{sT0}, s{sT0}, s{sROLE}
        s_cmp_lg_u32 s{sT0}, 10
        s_cbranch_scc1 L_nozero
        v_lshrrev_b32 v1, 2, v0
        v_and_b32 v2, 3, v0
        v_lshlrev_b32 v2, 4, v2
        v_lshl_add_u32 v1, v1, 7, v2
        v_mov_b32 v4, 0
        v_mov_b32 v5, 0
        v_mov_b32 v6, 0
        v_mov_b32 v7, 0
        s_mul_i32 s{sT0}, s{sGRP}, {MB*128}
        s_add_u32 s{sT0}, s{sT0}, {FLAG_OFF}
        s_mov_b32 exec_hi, 0xffffff
        buffer_store_dwordx4 v[4:7], v1, s[{SWS}:{SWS+3}], s{sT0} offen sc1
        s_lshl_b32 s{sT0}, s{sGRP}, 2
        v_mov_b32 v2, 1
        s_mov_b64 exec, 1
        s_waitcnt vmcnt(0)
        buffer_store_dword v2, off, s[{SDBG}:{SDBG+3}], s{sT0} sc1
        s_mov_b64 exec, -1
        L_nozero:
        s_barrier
        L_ccommon:
        s_mul_i32 s{sD}, s{sGRP}, {MB*128}
        s_add_u32 s{sD}, s{sD}, {FLAG_OFF}
        s_lshl_b32 s{sT0}, s{sROLE}, 2
        v_lshl_add_u32 v7, v0, 7, s{sT0}
        v_mov_b32 v8, 1
        s_waitcnt vmcnt(0)
        """)
        self.stamp(4)
        a("s_barrier")
        a(f"""
        s_cmp_lg_u32 s{sWAVE}, 0
        s_cbranch_scc1 L_noadd
        s_cmp_gt_u32 s{sROLE}, 9
        s_cbranch_scc1 L_noadd
        s_mov_b64 exec, 0x3fff
        buffer_store_dword v8, v7, s[{SWS}:{SWS+3}], s{sD} offen sc1
        s_mov_b64 exec, -1
        L_noadd:
        """)
        self.afrags(AF, vTw, vT8, LWF)
        a(f"""
        s_lshl_b32 s{sT0}, s{sLW}, 9
        v_lshlrev_b32 v4, 3, v0
        v_add_u32 v4, s{sT0}, v4
        v_and_b32 v2, 7, v{vJ}
        v_lshl_add_u32 v2, v{vG}, 3, v2
        v_lshlrev_b32 v3, 3, v2
        v_lshlrev_b32 v2, 4, v2
        v_add_u32 v3, {FB+2048}, v3
        v_add_u32 v5, {FE}, v2
        s_lshl_b32 s{sT0}, s{sLW}, 10
        v_add_u32 v6, s{sT0}, v5
        v_add_u32 v2, {FB}, v2
        s_cmp_lg_u32 s{sWAVE}, 1
        s_cbranch_scc1 L_nopoll
        s_lshl_b32 s{sT0}, s{sROLE}, 7
        s_add_u32 s{sT0}, s{sT0}, s{sD}
        s_mov_b32 s{sT1}, 0
        v_lshlrev_b32 v7, 2, v0
        s_mov_b64 exec, 0x3ff
        L_poll:
        buffer_load_dword v1, v7, s[{SWS}:{SWS+3}], s{sT0} offen sc1
        s_add_u32 s{sT1}, s{sT1}, 1
        s_waitcnt vmcnt(0)
        v_cmp_ne_u32 vcc, 1, v1
        s_cbranch_vccz L_polld
        s_cmp_lt_u32 s{sT1}, 0x40000
        s_cbranch_scc1 L_poll
        L_polld:
        s_mov_b64 exec, -1
        L_nopoll:
        s_waitcnt lgkmcnt(0)
        """)
        self.stamp(5)
        a("s_barrier")
        self.vC1 = 220
        self.cyc(0)
        self.gather(4, BF, BF + 20)
        a("s_waitcnt lgkmcnt(0)")
        self.cyc(3); self.cycflush(50, 4)
        self.stamp(6)
        self.cyc(0)
        a("s_barrier")
        self.cyc(1)
        for c in range(4): a(f"ds_read_b128 {vr(BF+4*c,4)}, v2 offset:{512*c}")
        a(f"ds_read_b64 {vr(BF+16,2)}, v3")
        a("s_waitcnt lgkmcnt(0)")
        self.cyc(2)
        self.smallgemm(AC, AF, BF)
        self.cyc(3)
        a(f"ds_write_b128 v6, {vr(AC,4)}")
        a(f"ds_write_b128 v6, {vr(AC+4,4)} offset:512")
        a(f"ds_write_b128 v5, {vr(AC+8,4)} offset:4096")
        a("s_waitcnt lgkmcnt(0)")
        self.cycflush(44, 4); self.cyc(0); self.cycflush(48, 1)
        self.stamp(7)
        a("s_barrier")
        if self.dev: self.dump()
        a("L_end:")
        a("s_endpgm")

    def build(self):
        self.prologue(); self.loader(); self.compute()
        body = self.a.finish()
        ref = open(f"cdna_kernels/{NAME}.s.ref").read().split('\n')
        head = [l for l in ref if l.startswith(';') and '@launch' not in l]
        out = '\n'.join(head) + f"\n; @launch grid=({NWG},1,1) block=(512,1,1) lds=163840\n"
        out += f""".amdgcn_target "amdgcn-amd-amdhsa--gfx950"
.text
.globl {NAME}_kernel
.p2align 8
.type {NAME}_kernel,@function
{NAME}_kernel:
{body}.section .rodata,"a"
.p2align 6
.amdhsa_kernel {NAME}_kernel
  .amdhsa_next_free_vgpr 256
  .amdhsa_next_free_sgpr 102
  .amdhsa_accum_offset 256
  .amdhsa_group_segment_fixed_size 0
  .amdhsa_kernarg_size 80
  .amdhsa_user_sgpr_count 2
  .amdhsa_user_sgpr_kernarg_segment_ptr 1
  .amdhsa_system_sgpr_workgroup_id_x 1
.end_amdhsa_kernel
"""
        return out

if __name__ == "__main__":
    dev = "dev" in sys.argv[2:]
    open(sys.argv[1], "w").write(Gen(dev, sys.argv[2:]).build())

def check_ws(ws, fpre, ge, bf):
    import numpy as np
    p = bf(ws[:GE_OFF].view(np.uint16)).reshape(G, MB, 9, UNIT // 2)
    s = p.sum(axis=2)
    main = s[:, :, :1024].reshape(G, MB, 4, 4, 8, 2, 4)
    full = np.zeros((G, MB, 8, 144), np.float32)
    for w in range(4):
        for gg in range(4):
            for hf in range(2):
                full[:, :, :, 32*w + 16*hf + 4*gg: 32*w + 16*hf + 4*gg + 4] = main[:, :, w, gg, :, hf, :]
    ex = s[:, :, 1024:].reshape(G, MB, 4, 8, 4)
    for gg in range(4): full[:, :, :, 128 + 4*gg:132 + 4*gg] = ex[:, :, gg]
    worst = []
    for grp in range(G):
        m = 0
        for u in range(MB):
            for row in range(8):
                Fv = R*grp + (u >> 1) + 7*(8*(u & 1) + row)
                if Fv < 1000: r = fpre[0, Fv]
                elif 1008 <= Fv < 2008: r = fpre[1, Fv - 1008]
                else: continue
                d = np.abs(full[grp, u, row] - r)
                m = max(m, np.inf if np.isnan(d).any() else d.max())
        worst.append(round(float(m), 4))
    print("fpre err per group", worst, "scale", np.abs(fpre).mean())
    gw = ws[GE_OFF:GE_OFF + G*9216].view(np.float32).reshape(G, 9, 4, 16, 4)
    gr = (ge.reshape(16, 9, 4, 4) * K2).transpose(1, 2, 0, 3)
    print("ge err", np.abs(gw - gr[None]).max())
```

```python
import sys, struct
from asmlib import Asm, vr, sr

NAME = "standalone__seq2seq_rnn_t_joint__speech"
def f2u(x): return struct.unpack('<I', struct.pack('<f', x))[0]
def hx(x): return hex(x & 0xffffffff)

R = 112; G = 18; MB = 14; NWG = G * MB
XBYTES = 2304000; WBYTES = 1285632; GBYTES = 4608; MBYTES = 41472; OBYTES = 4608000
UNIT = 2304
GE_OFF = NWG * 9 * UNIT
FLAG_OFF = GE_OFF + G * 9216
STAMP_OFF = FLAG_OFF + NWG * 128
WS_USED = STAMP_OFF + NWG * 8 * 256
OOB = 0x80000000
XS = 17952; WSL = 16384
HB = 163840 - 8192
XL4 = HB - XS; W2s = XL4 - WSL; X3 = W2s - XS; W1s = X3 - WSL; X2 = W1s - XS
W0s = X2 - WSL; X1 = W0s - XS; X0 = X1 - XS
assert X0 >= 0 and X0 % 32 == 0
XSL = [X0, X1, X2, X3]; WSLOT = [W0s, W1s, W2s]
assert X2 >= 4 * 9216 and X3 >= 8 * 9216 and HB >= 16 * 9216
LWF = 0; LWO = 41472; LWG = 82944; FB = 126976; FE = 131072
EVEN = [X0, X0 + 64, X2, X2 + 64, X0, X0 + 64, X2, X2 + 64, XL4]
ODD = [XL4 + 64, X1, X1 + 64, X3, X3 + 64, X1, X1 + 64, X3, X3 + 64]
ITEM = [0, 5, 1, 6, 2, 7, 3, 8]
MASK20 = 0x55ffff; MASK21 = 0x57ffff
HBASE = [0, 11, 23, 35, 47, 57, 68, 79]
def mapping(wg):
    x, i = wg & 7, wg >> 3
    m = MASK20 if x & 3 else MASK21
    c = bin(m & ((1 << i) - 1)).count('1')
    if m >> i & 1: p = ((81 * x + 3) >> 2) + c; return p // 9, p % 9
    h = HBASE[x] + i - c; return h // 5, 9 + h % 5
assert sorted(mapping(w) for w in range(NWG)) == [(g, r) for g in range(G) for r in range(MB)]
C1 = -2.3022082; C2 = -0.10294324; K2 = 2.8853900817779268

SX, SW1, SW2, SG, SWF, SWG, SWO, SOUT, SDBG, SWS = 4, 8, 12, 16, 20, 24, 28, 32, 36, 40
sGRP, sROLE, sWAVE, sLW = 44, 45, 46, 47
sT0, sT1, sT2, sT3 = 48, 49, 50, 51
sA, sB, sC, sD = 52, 53, 54, 55
sEX = 56
sC1, sC2 = 58, 60
sR = 62
sK2 = 63
sTAB = 64
sST = 100
sX17 = sC1
sLX, sLWk = sC2, sR
sMSK, sHI = sEX, sEX + 1

class Gen:
    def __init__(self, dev=False, opts=()):
        self.a = Asm(); self.dev = dev; self.nst = 0; self.o = set(opts); self.lite = "lite" in self.o
        d = [x[4:] for x in self.o if x.startswith("diag")]; self.diag = d[0].split("_") if d else None

    def stamp(self, idx, clk=None):
        if self.diag and not self.isC and not self.inhelp:
            for k in (0, 1):
                if str(idx) == self.diag[k]: self.a(f"s_memrealtime s[{98-2*k}:{99-2*k}]")
        if not self.dev: return
        if self.lite and (isinstance(idx, str) or 11 <= idx <= 18 or 20 <= idx <= 31): return
        a = self.a
        for op, ix in (("s_memrealtime", idx), ("s_memtime", clk)):
            if ix is None: continue
            a(f"{op} s[{sST}:{sST+1}]")
            a("s_waitcnt lgkmcnt(0)")
            if idx == 0: a("s_mov_b32 s3, s98")
            if self.isC:
                if isinstance(ix, str):
                    a(f"s_mov_b32 m0, {ix}"); ix = "m0"
                a(f"v_writelane_b32 v255, s{sST}, {ix}")
            else: a(f"s_mov_b32 s{64+ix}, s{sST}")

    def cyc(self, k):
        if self.dev and "cyc" in self.o: self.a(f"s_memtime s[{92+2*k}:{93+2*k}]")
    def cycflush(self, base, n):
        if self.dev and "cyc" in self.o:
            self.a("s_waitcnt lgkmcnt(0)")
            for k in range(n): self.a(f"v_writelane_b32 v255, s{92+2*k}, {base+k}")

    def srd(self, s, off, nbytes):
        a = self.a
        a(f"s_load_dwordx2 s[{s}:{s+1}], s[0:1], {off}")
        a(f"s_mov_b32 s{s+2}, {nbytes}")
        a(f"s_mov_b32 s{s+3}, s{SX+3}")

    def prologue(self):
        a = self.a
        fA = [8 + q for q in range(5)]
        if self.dev or self.diag: a("s_memrealtime s[98:99]")
        for L in range(200): assert (L * 7282) >> 16 == L // 9 and (L * 13108) >> 16 == L // 5
        a(f"""
        s_cmpk_ge_u32 s2, {NWG}
        s_cbranch_scc1 L_end
        s_load_dwordx2 s[{SX}:{SX+1}], s[0:1], 0
        s_load_dwordx2 s[{SW1}:{SW1+1}], s[0:1], 8
        v_lshrrev_b32 v1, 6, v0
        s_lshr_b32 s{sT1}, s2, 3
        s_and_b32 s{sT0}, s{sT1}, 15
        v_readfirstlane_b32 s{sWAVE}, v1
        s_mul_i32 s{sT0}, s{sT0}, 9
        s_lshr_b32 s{sT2}, s{sT1}, 4
        s_add_u32 s{sT0}, s{sT0}, s{sT2}
        s_mulk_i32 s{sT0}, 9216
        s_addk_i32 s{sT0}, -4608
        v_lshl_add_u32 v2, v0, 7, s{sT0}
        v_cmp_gt_u32 vcc, 72, v0
        v_and_b32 v0, 63, v0
        s_mov_b32 s{sMSK}, {hx(MASK21)}
        s_and_b32 s{sT0}, s2, 3
        s_cmov_b32 s{sMSK}, {hx(MASK20)}
        s_and_b32 s{sT0}, s2, 7
        s_mulk_i32 s{sT0}, 81
        s_add_u32 s{sT0}, s{sT0}, 3
        s_lshr_b32 s{sT0}, s{sT0}, 2
        s_bfm_b32 s{sT2}, s{sT1}, 0
        s_and_b32 s{sT2}, s{sT2}, s{sMSK}
        s_bcnt1_i32_b32 s{sT2}, s{sT2}
        s_add_u32 s{sT0}, s{sT0}, s{sT2}
        s_sub_u32 s{sHI}, s{sT1}, s{sT2}
        s_lshr_b32 s{sMSK}, s{sMSK}, s{sT1}
        s_mul_i32 s{sGRP}, s{sT0}, 7282
        s_lshr_b32 s{sGRP}, s{sGRP}, 16
        s_mul_i32 s{sT1}, s{sGRP}, 9
        s_sub_u32 s{sROLE}, s{sT0}, s{sT1}
        s_and_b32 s{sLW}, s{sWAVE}, 3
        s_mov_b32 s{SX+2}, {XBYTES // 2}
        s_mov_b32 s{SX+3}, 0x20000
        s_mov_b32 s{SW1+2}, {WBYTES}
        s_mov_b32 s{SW1+3}, s{SX+3}
        s_cmp_gt_u32 s{sGRP}, 8
        s_cselect_b32 s{sA}, s{SX+2}, 0
        s_cselect_b32 s{sT1}, 1020, 12
        s_mul_i32 s{sT0}, s{sGRP}, {R}
        s_sub_u32 s{sT0}, s{sT0}, s{sT1}
        s_lshl3_add_u32 s{sT0}, s{sLW}, s{sT0}
        v_lshrrev_b32 v3, 3, v0
        v_add_u32 v3, s{sT0}, v3
        v_and_b32 v4, 7, v0
        v_lshlrev_b32 v4, 4, v4
        s_movk_i32 s{sB}, 1152
        v_mad_i32_i24 v{fA[0]}, v3, s{sB}, v4
        s_lshl_b32 s{sB}, s{sB}, 5
        s_mul_i32 s{sC}, s{sLW}, -9216
        s_add_u32 s{sC}, s{sC}, s{sB}
        s_lshl_b32 s{sD}, s{sLW}, 4
        s_bfm_b64 s[{sX17}:{sX17+1}], 16, s{sD}
        s_mul_i32 s{sLX}, s{sLW}, 1056
        s_cmp_lt_u32 s{sWAVE}, 4
        s_cselect_b32 s{sT0}, 3, 1
        s_cselect_b32 s{sT1}, {XL4 - X0}, 0
        s_lshl_b32 s{sT0}, s{sT0}, 8
        s_addk_i32 s{sT1}, {X0}
        s_add_u32 m0, s{sT1}, s{sLX}
        s_addk_i32 s{sT1}, {1056 * 16}
        s_mov_b64 exec, vcc
        s_bitcmp0_b32 s{sMSK}, 0
        s_waitcnt lgkmcnt(0)
        buffer_load_dword v1, v2, s[{SW1}:{SW1+3}], 0 offen
        s_mov_b64 exec, -1
        s_cbranch_scc1 L_help
        s_add_u32 s{SX}, s{SX}, s{sA}
        s_addc_u32 s{SX+1}, s{SX+1}, 0
        """)
        for q in range(4):
            if q: a(f"s_addk_i32 m0, {1056 * 4}\nv_add_u32 v{fA[q]}, s{sB}, v{fA[q-1]}")
            self.dma(fA[q], SX, f"s{sT0}")
        a(f"""
        s_mov_b32 m0, s{sT1}
        v_add_u32 v{fA[4]}, s{sC}, v{fA[3]}
        s_mov_b64 exec, s[{sX17}:{sX17+1}]
        """)
        self.dma(fA[4], SX, f"s{sT0}")
        a(f"""
        s_mov_b64 exec, -1
        s_cmp_lt_u32 s{sWAVE}, 4
        s_cbranch_scc1 L_cw
        L_p512:
        """)

    def srds(self, *which):
        for s, off, n in ((SW2, 16, WBYTES), (SG, 24, GBYTES), (SWF, 32, MBYTES), (SWG, 40, MBYTES), (SWO, 48, MBYTES),
                          (SOUT, 56, OBYTES), (SDBG, 64, 256), (SWS, 72, WS_USED)):
            if s in which: self.srd(s, off, n)

    def dma(self, v, srd, soff, off=0):
        o = f" offset:{off}" if off else ""
        self.a(f"buffer_load_dwordx4 v{v}, s[{srd}:{srd+3}], {soff} offen{o} lds")

    def load_mat(self, srd, lds, vM):
        a = self.a
        for i in range(11):
            if i % 4 == 0:
                a(f"s_add_u32 m0, s{sA}, {lds + 1024 * i}")
                a(f"s_mov_b32 s{sT0}, {1024 * i}")
            if i == 10: a("s_mov_b64 exec, 0xff")
            self.dma(vM, srd, f"s{sT0}", 1024 * (i % 4))
        a("s_mov_b64 exec, -1")

    def loader(self):
        a = self.a; self.isC = False; self.inhelp = False
        vW, vW0, vT, vU, vN = 2, 3, 4, 5, 6
        fA = [8 + q for q in range(5)]; fB = [13 + q for q in range(5)]
        vA1, vA0, vM1, vM0, vMat = 18, 19, 20, 21, 22
        a(f"""
        v_and_b32 v{vT}, 24, v0
        v_lshrrev_b32 v{vU}, 5, v0
        v_lshl_add_u32 v{vT}, v{vU}, 2, v{vT}
        v_bfe_u32 v{vU}, v0, 1, 2
        v_add_u32 v{vT}, v{vT}, v{vU}
        v_mul_u32_u24 v{vW}, 288, v{vT}
        v_and_b32 v{vU}, 1, v0
        v_lshl_add_u32 v{vW}, v{vU}, 4, v{vW}
        s_mul_i32 s{sT0}, s{sLW}, 82944
        s_lshl_b32 s{sT1}, s{sROLE}, 5
        s_add_u32 s{sT0}, s{sT0}, s{sT1}
        v_add_u32 v{vW}, s{sT0}, v{vW}
        v_subrev_u32 v{vW0}, 4608, v{vW}
        s_lshl_b32 s{sLWk}, s{sLW}, 10
        v_min_u32 v{vW0}, 0x80000000, v{vW0}
        """)
        matad = f"""
        v_lshlrev_b32 v{vMat}, 4, v0
        s_mul_i32 s{sA}, s{sLW}, 10368
        v_add_u32 v{vMat}, s{sA}, v{vMat}
        """
        def xdma(l, slot, q):
            regs = fA if l <= 6 else fB
            if q < 4:
                a(f"s_add_u32 m0, s{sLX}, {slot + 1056 * 4 * q}")
                self.dma(regs[q], SX, f"s{sT1}")
            else:
                a(f"s_mov_b32 m0, {slot + 1056 * 16}")
                a(f"s_mov_b64 exec, s[{sX17}:{sX17+1}]")
                self.dma(regs[4], SX, f"s{sT1}")
                a("s_mov_b64 exec, -1")
        def wdma(r, q):
            a(f"s_add_u32 m0, s{sLWk}, {WSLOT[r % 3] + 4096 * q}")
            if q == 0 and r == 0:
                self.dma(vW0, SW1, "0")
            else:
                a(f"s_mov_b32 s{sT0}, {331776 * q + 9216 * r - 4608}")
                self.dma(vW, SW1, f"s{sT0}")
        K = [int(x[1:]) for x in self.o if x[0] == "k" and x[1:].isdigit()]
        K = K[0] if K else 3
        def step(r, part):
            if 0 < r < 8:
                l = ITEM[r]
                a(f"s_movk_i32 s{sT1}, {256 + 128 * l if l <= 6 else 128 * (l - 7)}")
                if "seq" in self.o: o = "x0 x1 x2 x3 x4 w0 w1 w2 w3"
                elif "xf" in self.o: o = "x0 w0 x1 w1 x2 w2 x3 w3 x4"
                elif "ww" in self.o: o = "w0 w1 x0 x1 w2 x2 x3 w3 x4"
                else: o = "w0 x0 w1 x1 w2 x2 w3 x3 x4"
            else: o = "w0 w1 w2 w3"
            o = o.split(); o = o[K:] if part else o[:K]
            for t in o:
                if t[0] == "x": xdma(l, XSL[r % 4], int(t[1]))
                else: wdma(r, int(t[1]))
            return len(o)
        self.stamp(0)
        step(0, 0); step(0, 1)
        if "w0t" in self.o:
            self.stamp(5)
            for i in range(4): a(f"s_waitcnt vmcnt({4 - i})"); self.stamp(6 + i)
            a(f"s_waitcnt vmcnt(0)"); self.stamp(10)
        step(1, 0); self.stamp(25)
        self.srds(SW2, SWF, SWO, SOUT, SDBG, SWS)
        for q in range(5): a(f"v_add_u32 v{fB[q]}, 1152, v{fA[q]}")
        a(matad)
        a("v_bfrev_b32 v7, 1")
        a(f"v_min_u32 v{fA[0]}, v7, v{fA[0]}")
        a(f"""
        s_mul_i32 s{sT0}, s{sROLE}, 4608
        s_mul_i32 s{sT1}, s{sLW}, 82944
        s_add_u32 s{sT0}, s{sT0}, s{sT1}
        v_lshlrev_b32 v{vA1}, 4, v0
        v_add_u32 v{vA1}, s{sT0}, v{vA1}
        v_lshrrev_b32 v{vT}, 5, v0
        v_mul_u32_u24 v{vT}, {41472 - 4608}, v{vT}
        v_add_u32 v{vM1}, 4096, v{vA1}
        v_add_u32 v{vM1}, v{vT}, v{vM1}
        v_subrev_u32 v{vA0}, 41472, v{vA1}
        v_subrev_u32 v{vM0}, 41472, v{vM1}
        s_cmp_eq_u32 s{sLW}, 0
        s_cselect_b64 vcc, -1, 0
        v_cndmask_b32 v{vA0}, v{vA0}, v7, vcc
        s_mov_b32 vcc_hi, 0
        v_cndmask_b32 v{vM0}, v{vM0}, v7, vcc
        s_mul_i32 s{sB}, s{sLW}, 9216
        """)
        def w2grp(g):
            if g: a(f"s_mov_b32 s{sT0}, {g * 331776 - 41472}")
            so = f"s{sT0}" if g else "0"
            a(f"s_add_u32 m0, s{sB}, {36864 * g}")
            for i in range(4): self.dma(vA1 if g else vA0, SW2, so, 1024 * i)
            a(f"s_add_u32 m0, s{sB}, {36864 * g + 4096}")
            self.dma(vM1 if g else vM0, SW2, so)
            a(f"s_add_u32 m0, s{sB}, {36864 * g + 5120}")
            a(f"s_mov_b32 s{sT0}, {g * 331776 + 512}")
            for i in range(4): self.dma(vA1, SW2, f"s{sT0}", 1024 * i)
        a(f"s_waitcnt vmcnt({K})"); self.stamp(1); a("s_barrier")
        bar = "s_nop 0" if "nobar" in self.o else "s_barrier"
        for r in range(1, 8):
            n = K
            if "nodma" not in self.o: step(r, 1); n = step(r + 1, 0)
            if r > 1: self.stamp(24 + r)
            a(f"s_waitcnt vmcnt({n}) lgkmcnt(0)"); self.stamp(10 + r); a(bar)
        if "nodma" not in self.o: step(8, 1)
        if "nobar" in self.o: a("s_waitcnt vmcnt(0)"); self.stamp(10)
        w2grp(0)
        a("s_waitcnt vmcnt(9)"); self.stamp(18); a(bar)
        w2grp(1)
        a("s_waitcnt vmcnt(9)"); self.stamp(19); a("s_barrier")
        a("s_waitcnt vmcnt(0)"); self.stamp(20); a("s_barrier")
        w2grp(2); w2grp(3)
        a("s_waitcnt vmcnt(9)"); self.stamp(21); a("s_barrier")
        self.load_mat(SWF, LWF, vMat)
        a("s_waitcnt vmcnt(11)"); self.stamp(22); a("s_barrier")
        self.load_mat(SWO, LWO, vMat)
        a("s_branch L_lcommon")
        a("L_help:")
        tab = sum(v << (8 * i) for i, v in enumerate(HBASE))
        a(f"""
        s_and_b32 s{sT0}, s2, 7
        s_lshl_b32 s{sT0}, s{sT0}, 3
        s_mov_b32 s{sT2}, {hx(tab)}
        s_mov_b32 s{sT3}, {hx(tab >> 32)}
        s_lshr_b64 s[{sT2}:{sT3}], s[{sT2}:{sT3}], s{sT0}
        s_and_b32 s{sT2}, s{sT2}, 255
        s_add_u32 s{sT2}, s{sT2}, s{sHI}
        s_mul_i32 s{sGRP}, s{sT2}, 13108
        s_lshr_b32 s{sGRP}, s{sGRP}, 16
        s_mul_i32 s{sT1}, s{sGRP}, 5
        s_sub_u32 s{sROLE}, s{sT2}, s{sT1}
        s_add_u32 s{sROLE}, s{sROLE}, 9
        """)
        a(f"s_cmp_lt_u32 s{sWAVE}, 4\ns_cbranch_scc1 L_cw")
        self.srds(SW2, SWF, SWG, SWO, SOUT, SDBG, SWS)
        a(f"s_mov_b32 s{SX+2}, {XBYTES}")
        self.inhelp = True; self.prefetch(); self.inhelp = False
        a(matad)
        a("s_waitcnt lgkmcnt(0)")
        a(f"s_cmp_lg_u32 s{sROLE}, 9")
        a("s_cbranch_scc1 L_lhelp2")
        self.load_mat(SWG, LWG, vMat)
        a("L_lhelp2:")
        a("s_waitcnt vmcnt(0)\ns_barrier")
        if "nohw" not in self.o:
            self.load_mat(SWF, LWF, vMat)
            self.load_mat(SWO, LWO, vMat)
        a("L_lcommon:")
        a(f"""
        s_cmp_lg_u32 s{sLW}, 0
        s_cbranch_scc1 L_nochk
        s_lshl_b32 s{sT0}, s{sGRP}, 2
        s_mov_b32 s{sT1}, 0
        L_chk:
        buffer_load_dword v1, off, s[{SDBG}:{SDBG+3}], s{sT0} sc1
        s_add_u32 s{sT1}, s{sT1}, 1
        s_waitcnt vmcnt(0)
        v_readfirstlane_b32 s{sT2}, v1
        s_cmp_lg_u32 s{sT2}, 0
        s_cbranch_scc1 L_nochk
        s_cmp_lt_u32 s{sT1}, 0x40000
        s_cbranch_scc1 L_chk
        L_nochk:
        """)
        a("s_waitcnt vmcnt(0)"); self.stamp(2); a("s_barrier")
        self.loader_p2()

    def prefetch(self):
        a = self.a
        sX, sCU = sB, sHI
        for L in range(1170): assert (L * 911) >> 16 == L // 72
        a(f"""
        s_and_b32 s{sX}, s2, 7
        v_bfrev_b32 v1, 1
        s_cmp_gt_u32 s{sCU}, 9
        s_cselect_b32 s{sT0}, 3, s{sLW}
        s_cmp_eq_u32 s{sT0}, 3
        s_cbranch_scc1 L_pfd
        """)
        if "nopf" in self.o: a("s_branch L_pfd")
        self.stamp(0)
        a(f"""
        s_cmp_eq_u32 s{sLW}, 2
        s_cbranch_scc1 L_pfx
        s_mul_i32 s{sT0}, s{sCU}, 116
        s_lshl_b32 s{sT1}, s{sLW}, 6
        v_add_u32 v3, s{sT1}, v0
        v_add_u32 v2, s{sT0}, v3
        v_mul_u32_u24 v4, 911, v2
        v_lshrrev_b32 v4, 16, v4
        v_mul_u32_u24 v4, {82944 - 72 * 128}, v4
        v_lshl_add_u32 v2, v2, 7, v4
        v_cmp_gt_u32 vcc, 116, v3
        v_cndmask_b32 v2, v1, v2, vcc
        """)
        pw = [int(x[2:]) for x in self.o if x.startswith("pw")]
        pw = pw[0] if pw else 2
        for r in range(2, 9):
            a(f"s_mov_b32 s{sT0}, {9216 * r - 4608}")
            if r - 2 >= pw: a(f"s_waitcnt vmcnt({pw - 1})")
            a(f"buffer_load_dword v5, v2, s[{SW1}:{SW1+3}], s{sT0} offen")
        a(f"""
        s_branch L_pfw2
        L_pfx:
        s_mul_i32 s{sT0}, s{sX}, {2 * R}
        s_cmp_gt_u32 s{sX}, 3
        s_cselect_b32 s{sT1}, {R - 20}, -12
        s_add_u32 s{sT0}, s{sT0}, s{sT1}
        s_mul_i32 s{sT2}, s{sCU}, 36
        s_add_u32 s{sT0}, s{sT0}, s{sT2}
        s_mul_i32 s{sT0}, s{sT0}, 1152
        v_mul_u32_u24 v2, 1152, v0
        v_add_u32 v2, s{sT0}, v2
        v_cmp_gt_u32 vcc, 36, v0
        v_min_u32 v2, v1, v2
        v_cndmask_b32 v2, v1, v2, vcc
        """)
        for n, l in enumerate((5, 1, 6, 2, 7, 3, 8)):
            if n > pw: a(f"s_waitcnt vmcnt({pw - 1})")
            a(f"buffer_load_dword v5, v2, s[{SX}:{SX+3}], 0 offen offset:{256 + 128 * l}")
        a(f"""
        L_pfw2:
        s_mul_i32 s{sT0}, s{sLW}, 10
        s_add_u32 s{sT0}, s{sT0}, s{sCU}
        s_lshl_b32 s{sT0}, s{sT0}, 13
        v_lshlrev_b32 v2, 7, v0
        s_waitcnt lgkmcnt(0)
        """)
        self.stamp(5)
        if self.dev and not self.lite: a("s_waitcnt vmcnt(8)"); self.stamp(6); a("s_waitcnt vmcnt(0)"); self.stamp(7)
        for i in range(0 if "nop2" in self.o else 6):
            if i: a(f"s_add_u32 s{sT0}, s{sT0}, {30 * 8192}")
            if pw < 9: a(f"s_waitcnt vmcnt({pw - 1})")
            a(f"buffer_load_dword v5, v2, s[{SW2}:{SW2+3}], s{sT0} offen")
        self.stamp(8)
        if self.dev: a("s_waitcnt vmcnt(0)"); self.stamp(9)
        a("L_pfd:")

    def gelu4(self, x, t, one):
        a = self.a
        o = vr(one, 2) if one is not None else "1.0"
        for h in (0, 2): a(f"v_pk_mul_f32 {vr(t+h,2)}, {vr(x+h,2)}, {vr(x+h,2)}")
        for h in (0, 2): a(f"v_pk_fma_f32 {vr(t+h,2)}, {vr(t+h,2)}, s[{sC2}:{sC2+1}], {vr(self.vC1,2)}")
        for h in (0, 2): a(f"v_pk_mul_f32 {vr(t+h,2)}, {vr(t+h,2)}, {vr(x+h,2)}")
        for h in range(4): a(f"v_exp_f32 v{t+h}, v{t+h}")
        for h in (0, 2):
            if one is None: a(f"v_pk_add_f32 {vr(t+h,2)}, {vr(t+h,2)}, 1.0 op_sel_hi:[1,0]")
            else: a(f"v_pk_add_f32 {vr(t+h,2)}, {vr(t+h,2)}, {o}")
        for h in range(4): a(f"v_rcp_f32 v{t+h}, v{t+h}")
        for h in (0, 2): a(f"v_pk_mul_f32 {vr(x+h,2)}, {vr(x+h,2)}, {vr(t+h,2)}")

    def gather(self, vo, P, T):
        a = self.a
        a(f"s_mul_i32 s{sT0}, s{sGRP}, {MB}")
        a(f"s_add_u32 s{sT0}, s{sT0}, s{sROLE}")
        a(f"s_mul_i32 s{sT0}, s{sT0}, {9 * UNIT}")
        for n in range(9):
            if n and n % 2 == 0: a(f"s_add_u32 s{sT0}, s{sT0}, {2 * UNIT}")
            o = f" offset:{UNIT}" if n % 2 else ""
            a(f"buffer_load_dwordx2 {vr(P+2*n,2)}, v{vo}, s[{SWS}:{SWS+3}], s{sT0} offen{o} sc1")
        a(f"s_mov_b32 s{sC2}, {hx(f2u(C2))}\ns_mov_b32 s{sC2+1}, {hx(f2u(C2))}")
        a(f"v_mov_b32 v{self.vC1}, {hx(f2u(C1))}\nv_mov_b32 v{self.vC1+1}, {hx(f2u(C1))}")
        a(f"s_mov_b32 s{sT1}, 0xffff0000")
        for n in range(9):
            a(f"s_waitcnt vmcnt({8-n})")
            if self.isC and n in (0, 8): self.cyc(1 if n == 0 else 2)
            d = T if n == 0 else T + 4
            for h in (0, 1):
                a(f"v_lshlrev_b32 v{d+2*h}, 16, v{P+2*n+h}")
                a(f"v_and_b32 v{d+2*h+1}, s{sT1}, v{P+2*n+h}")
            if n:
                for h in (0, 2): a(f"v_pk_add_f32 {vr(T+h,2)}, {vr(T+h,2)}, {vr(T+4+h,2)}")
        self.gelu4(T, T + 4, None)
        a(f"v_cvt_pk_bf16_f32 v{T}, v{T}, v{T+1}")
        a(f"v_cvt_pk_bf16_f32 v{T+1}, v{T+2}, v{T+3}")
        a(f"v_add_u32 v{vo}, {FB}, v{vo}")
        a(f"ds_write_b64 v{vo}, {vr(T,2)}")

    def loader_p2(self):
        a = self.a
        WO = 94
        GEr = 58
        ACC = 20
        Fb = 4
        vAd, vO = 2, 3
        self.vC1 = 56
        a(f"""
        v_lshrrev_b32 v{vAd}, 2, v0
        v_mul_u32_u24 v{vAd}, 288, v{vAd}
        v_and_b32 v1, 3, v0
        v_lshl_add_u32 v{vO}, v1, 3, v{vAd}
        v_lshl_add_u32 v{vAd}, v1, 4, v{vAd}
        v_add_u32 v{vO}, {LWO}, v{vO}
        v_add_u32 v{vAd}, {LWO}, v{vAd}
        """)
        n = 0
        for c in range(5):
            for t in range(9):
                for h in range(2 if c < 4 else 1):
                    ro = (32 * c + 16 * h) * 288
                    d = WO + 36 * c + 4 * t + 2 * h if c < 4 else WO + 144 + 2 * t
                    if t < 8: a(f"ds_read_b64_tr_b16 {vr(d,2)}, v{vAd} offset:{ro + 64 * (t >> 1) + 8 * (t & 1)}")
                    else: a(f"ds_read_b64_tr_b16 {vr(d,2)}, v{vO} offset:{ro + 256}")
        a(f"""
        v_lshrrev_b32 v1, 4, v0
        v_lshlrev_b32 v{vAd}, 8, v1
        v_bfe_u32 v{Fb}, v0, 3, 1
        s_lshl_b32 s{sT0}, s{sLW}, 1
        v_add_u32 v{Fb}, s{sT0}, v{Fb}
        v_lshl_add_u32 v{vAd}, v{Fb}, 4, v{vAd}
        s_cmp_gt_u32 s{sGRP}, 8
        s_cselect_b32 s{sT1}, 128, 0
        s_cselect_b32 s{sT2}, 8, 0
        s_cselect_b32 s{sT3}, -1, 1000
        s_mul_i32 s{sB}, s{sGRP}, 9216
        s_add_u32 s{sB}, s{sB}, s{sT1}
        s_add_u32 s{sB}, s{sB}, {GE_OFF}
        """)
        a(f"""
        s_mul_i32 s{sT0}, s{sGRP}, {R}
        s_lshr_b32 s{sT1}, s{sROLE}, 1
        s_add_u32 s{sT0}, s{sT0}, s{sT1}
        s_and_b32 s{sT1}, s{sROLE}, 1
        s_mul_i32 s{sT1}, s{sT1}, 56
        s_add_u32 s{sT0}, s{sT0}, s{sT1}
        s_sub_u32 s{sT0}, s{sT0}, s{sT2}
        v_and_b32 v{Fb+1}, 7, v0
        v_mad_u32_u24 v{Fb+2}, v{Fb+1}, 7, s{sT0}
        v_cmp_gt_u32 vcc, s{sT3}, v{Fb+2}
        v_lshl_add_u32 v{Fb+2}, v{Fb+2}, 3, v{Fb}
        v_mul_u32_u24 v{Fb+2}, 288, v{Fb+2}
        v_lshl_add_u32 v{Fb+2}, v1, 3, v{Fb+2}
        v_bfrev_b32 v{Fb+3}, 1
        v_cndmask_b32 v{vO}, v{Fb+3}, v{Fb+2}, vcc
        """)
        a("s_waitcnt lgkmcnt(0)")
        a("s_barrier")
        for t in range(9):
            if t == 4 or t == 8: a(f"s_add_u32 s{sB}, s{sB}, 4096")
            o = f" offset:{1024 * (t % 4)}" if t % 4 else ""
            a(f"buffer_load_dwordx4 {vr(GEr+4*t,4)}, v{vAd}, s[{SWS}:{SWS+3}], s{sB} offen{o} sc1")
        a(f"s_cmp_lg_u32 s{sLW}, 0")
        a("s_cbranch_scc1 L_nog")
        a("s_mov_b32 exec_hi, 0")
        a(f"v_lshlrev_b32 v{Fb+4}, 3, v0")
        a(f"v_add_u32 v{Fb+4}, 2048, v{Fb+4}")
        self.gather(Fb + 4, ACC, ACC + 18)
        a("s_mov_b64 exec, -1")
        a("s_waitcnt lgkmcnt(0)")
        a("L_nog:")
        a(f"""
        v_lshlrev_b32 v{vAd}, 7, v1
        v_lshl_add_u32 v{vAd}, v{Fb+1}, 4, v{vAd}
        v_add_u32 v{vAd}, {FE}, v{vAd}
        v_lshl_add_u32 v1, v1, 3, v{vO}
        s_barrier
        s_waitcnt vmcnt(0)
        s_barrier
        """)
        self.stamp(3)
        def rd(c):
            b = Fb + 8 * (c & 1)
            a(f"ds_read_b128 {vr(b,4)}, v{vAd} offset:{1024 * c}")
            if c < 4: a(f"ds_read_b128 {vr(b+4,4)}, v{vAd} offset:{1024 * c + 512}")
        rd(0); rd(1)
        for c in range(5):
            b = Fb + 8 * (c & 1); nv = 8 if c < 4 else 4
            a(f"s_waitcnt lgkmcnt({0 if c == 4 else (1 if c == 3 else 2)})")
            ge = GEr + 8 * c
            for h in range(0, nv, 2): a(f"v_pk_add_f32 {vr(ge+h,2)}, {vr(ge+h,2)}, {vr(b+h,2)}")
            if c + 2 <= 4: rd(c + 2)
            for h in range(nv): a(f"v_exp_f32 v{ge+h}, v{ge+h}")
            for h in range(0, nv, 2): a(f"v_pk_add_f32 {vr(ge+h,2)}, {vr(ge+h,2)}, 1.0 op_sel_hi:[1,0]")
            for h in range(nv): a(f"v_rcp_f32 v{ge+h}, v{ge+h}")
            for h in range(0, nv, 2): a(f"v_pk_fma_f32 {vr(ge+h,2)}, {vr(ge+h,2)}, -2.0, 1.0 op_sel_hi:[1,0,0]")
            for h in range(0, nv, 2): a(f"v_cvt_pk_bf16_f32 v{ge+h//2}, v{ge+h}, v{ge+h+1}")
            for t in range(9):
                cc = "0" if c == 0 else vr(ACC + 4 * t, 4)
                if c < 4: a(f"v_mfma_f32_16x16x32_bf16 {vr(ACC+4*t,4)}, {vr(WO+36*c+4*t,4)}, {vr(ge,4)}, {cc}")
                else: a(f"v_mfma_f32_16x16x16_bf16 {vr(ACC+4*t,4)}, {vr(WO+144+2*t,2)}, {vr(ge,2)}, {cc}")
        for cp in range(4):
            s = ACC + 8 * cp; d = Fb + 4 * cp
            for h in range(4): a(f"v_cvt_pk_bf16_f32 v{d+h}, v{s+2*h}, v{s+2*h+1}")
            o = f" offset:{64 * cp}" if cp else ""
            a(f"buffer_store_dwordx4 {vr(d,4)}, v1, s[{SOUT}:{SOUT+3}], 0 offen{o}")
        s = ACC + 32
        for h in range(2): a(f"v_cvt_pk_bf16_f32 v{GEr+h}, v{s+2*h}, v{s+2*h+1}")
        a(f"buffer_store_dwordx2 {vr(GEr,2)}, v{vO}, s[{SOUT}:{SOUT+3}], 0 offen offset:256")
        if self.dev:
            a("s_waitcnt vmcnt(0)"); self.stamp(4); self.dump()
        if self.diag:
            self.stamp(4)
            a(f"""
            s_cmp_gt_u32 s{sROLE}, 8
            s_cbranch_scc1 L_dgend
            s_memrealtime s[94:95]
            s_waitcnt lgkmcnt(0)
            s_sub_u32 s96, s96, s98
            s_lshl_b32 s96, s96, 1
            s_min_u32 s96, s96, 20000
            L_dg:
            s_memrealtime s[92:93]
            s_waitcnt lgkmcnt(0)
            s_sub_u32 s92, s92, s94
            s_cmp_lt_u32 s92, s96
            s_cbranch_scc1 L_dg
            L_dgend:
            """)
        a("s_endpgm")

    def dump(self):
        a = self.a
        a(f"s_lshl_b32 s{sT0}, s2, 3\ns_add_u32 s{sT0}, s{sT0}, s{sWAVE}\ns_lshl_b32 s{sT0}, s{sT0}, 8\ns_add_u32 s{sT0}, s{sT0}, {STAMP_OFF}")
        if not self.isC:
            for i in range(36): a(f"v_writelane_b32 v255, s{64+i}, {i}")
        a("v_writelane_b32 v255, s3, 61")
        a("s_getreg_b32 s3, hwreg(HW_REG_HW_ID)\nv_writelane_b32 v255, s3, 60\ns_getreg_b32 s3, hwreg(HW_REG_XCC_ID)\nv_writelane_b32 v255, s3, 59")
        a(f"v_writelane_b32 v255, s{sGRP}, 62\nv_writelane_b32 v255, s{sROLE}, 63")
        a(f"v_lshlrev_b32 v1, 2, v0\nbuffer_store_dword v255, v1, s[{SWS}:{SWS+3}], s{sT0} offen")

    def afrags(self, dst, vad, vad8, base):
        a = self.a
        for c in range(5):
            for t in range(3):
                for h in range(2 if c < 4 else 1):
                    ro = base + (32 * c + 16 * h) * 288
                    d = dst + 12 * c + 4 * t + 2 * h if c < 4 else dst + 48 + 2 * t
                    if t < 2: a(f"ds_read_b64_tr_b16 {vr(d,2)}, v{vad} offset:{ro + 32 * t}")
                    else: a(f"ds_read_b64_tr_b16 {vr(d,2)}, v{vad8} offset:{ro + 256}")

    def smallgemm(self, acc, A, B):
        a = self.a
        for c in range(5):
            for t in range(3):
                cc = "0" if c == 0 else vr(acc + 4 * t, 4)
                if c < 4: a(f"v_mfma_f32_16x16x32_bf16 {vr(acc+4*t,4)}, {vr(A+12*c+4*t,4)}, {vr(B+4*c,4)}, {cc}")
                else: a(f"v_mfma_f32_16x16x16_bf16 {vr(acc+4*t,4)}, {vr(A+48+2*t,2)}, {vr(B+16,2)}, {cc}")
        a(f"s_mov_b32 s{sC1}, {hx(f2u(K2))}\ns_mov_b32 s{sC1+1}, {hx(f2u(K2))}")
        for h in range(0, 12, 2): a(f"v_pk_mul_f32 {vr(acc+h,2)}, {vr(acc+h,2)}, s[{sC1}:{sC1+1}]")

    def compute(self):
        a = self.a; self.isC = True
        aE = [2, 3, 4, 5]; aO = [6, 7, 8, 9]; cst = [10, 11, 12, 13]; aW = 14; l8 = 15
        ACC = 16; W = 32; X = 96
        vJ, vG = 172, 173
        vT8, vTw = 174, 175
        a("L_cw:")
        self.srds(SG, SDBG, SWS)
        a(f"""
        v_and_b32 v{vJ}, 15, v0
        v_lshrrev_b32 v{vG}, 4, v0
        v_lshrrev_b32 v{vT8}, 2, v0
        v_mul_u32_u24 v{vT8}, 288, v{vT8}
        v_and_b32 v2, 3, v0
        v_lshl_add_u32 v{vT8}, v2, 3, v{vT8}
        s_lshl_b32 s{sT0}, s{sLW}, 6
        v_add_u32 v{vTw}, s{sT0}, v{vT8}
        s_cmp_gt_u32 s{sROLE}, 8
        s_cbranch_scc1 L_chelp
        v_lshlrev_b32 v{l8}, 3, v0
        v_mul_u32_u24 v{cst[0]}, 1056, v{vJ}
        v_lshl_add_u32 v{cst[0]}, v{vG}, 4, v{cst[0]}
        s_lshl_b32 s{sT0}, s{sLW}, 8
        v_add_u32 v{cst[0]}, s{sT0}, v{cst[0]}
        """)
        for c in (1, 2, 3):
            a(f"s_cmp_ge_u32 s{sLW}, {4 - c}\ns_cselect_b32 s{sT0}, 32, 0\nv_add_u32 v{cst[c]}, s{sT0}, v{cst[0]}")
        for r in range(1, 9):
            a(f"s_mov_b32 s{sTAB+r}, {EVEN[r]}\ns_mov_b32 s{sTAB+9+r}, {ODD[r]}\ns_mov_b32 s{sTAB+18+r}, {WSLOT[r%3]}")
        for c in range(4):
            a(f"v_add_u32 v{aE[c]}, {EVEN[0]}, v{cst[c]}\nv_add_u32 v{aO[c]}, {ODD[0]}, v{cst[c]}")
        a(f"v_add_u32 v{aW}, {WSLOT[0]}, v{l8}")
        for i in range(16): a(f"v_mov_b32 v{ACC+i}, 0")
        a(f"s_mov_b32 s{sR}, 0")
        def rdX(u):
            d = u >> 1; cl = (d >> 1) & 3
            off = 128 * d + (32 if d >= 8 else 0)
            return f"ds_read_b128 {vr(X+4*u,4)}, v{(aO if u & 1 else aE)[cl]} offset:{off}"
        def rdW(m, h): return f"ds_read_b64_tr_b16 {vr(W+4*m+2*h,2)}, v{aW} offset:{1024*m+512*h}"
        def Gm(m): return [rdW(m, 0), rdW(m, 1), rdX(m + 3)]
        first = [rdX(0), rdX(1), rdX(2)] + Gm(0) + Gm(1) + Gm(2) + Gm(3)
        def mf(m, i): return f"v_mfma_f32_16x16x32_bf16 {vr(ACC+4*i,4)}, {vr(W+4*m,4)}, {vr(X+4*(m+i),4)}, {vr(ACC+4*i,4)}"
        def inter(mfs, fill):
            n = len(mfs); k = 0
            for i, x in enumerate(mfs):
                a(x)
                upto = (len(fill) * (i + 1) + n - 1) // n
                while k < upto: a(fill[k]); k += 1
        a("s_waitcnt lgkmcnt(0)")
        self.stamp(0)
        a("s_waitcnt vmcnt(0)")
        self.stamp(10)
        a("s_barrier")
        self.stamp(1, 8)
        for x in first: a(x)
        a("L_c1:")
        for m in range(13):
            a("s_waitcnt lgkmcnt(9)")
            if m < 12: fill = Gm(m + 4)
            else:
                fill = [f"v_add_u32 v{aW}, s{sC}, v{l8}"]
                for c in range(4): fill += [f"v_add_u32 v{aE[c]}, s{sA}, v{cst[c]}", f"v_add_u32 v{aO[c]}, s{sB}, v{cst[c]}"]
            if m == 10: fill = fill + [f"s_add_u32 s{sR}, s{sR}, 1", f"s_min_u32 m0, s{sR}, 8"]
            if m == 11: fill = fill + [f"s_movrels_b32 s{sA}, s{sTAB}", f"s_movrels_b32 s{sB}, s{sTAB+9}", f"s_movrels_b32 s{sC}, s{sTAB+18}"]
            inter([mf(m, i) for i in range(4)], fill)
        if self.dev: a(f"s_add_u32 s{sT0}, s{sR}, 10")
        a(f"s_cmp_eq_u32 s{sR}, 9")
        a("s_waitcnt lgkmcnt(0)"); self.stamp(f"s{sT0}"); a("s_nop 0" if "nobar" in self.o else "s_barrier")
        a("s_cbranch_scc1 L_c1tail")
        inter([mf(m, i) for m in (13, 14) for i in range(4)], first)
        a(f"s_cmp_gt_u32 s{sR}, 5")
        a("s_cbranch_scc1 L_c1")
        for i in range(4): a(mf(15, i))
        a("s_branch L_c1")
        a("L_c1tail:")
        if self.lite and "cyc" not in self.o: self.stamp(19)
        self.cyc(0)
        if "nobar" in self.o: a("s_barrier")
        W2 = 176
        HE = 200
        vHa, vHe = 216, 217
        vOne = 218
        self.vC1 = 220
        vW2a, vW2b = 222, 223
        TMP = 224
        A2 = 32
        H = 96
        def rdW2(k):
            b = W2 + 12 * (k & 1); o = 9216 * (k % 7)
            return [f"ds_read_b64_tr_b16 {vr(b+4*t+2*h,2)}, v{vW2a if t < 2 else vW2b} offset:{o + 4608*h + (32*t if t < 2 else 256)}"
                    for t in range(3) for h in range(2)]
        pre = [f"v_mov_b32 v{vW2a}, v{vTw}", f"v_mov_b32 v{vW2b}, v{vT8}"] + rdW2(0)
        pre += [f"s_mul_i32 s{sT0}, s{sGRP}, 14", f"s_sub_u32 s{sT0}, s{sT0}, 1", f"v_add_u32 v1, s{sT0}, v{vJ}",
                f"s_movk_i32 s{sT1}, 251", f"s_movk_i32 s{sT2}, 125",
                f"v_cmp_gt_u32 vcc, s{sT1}, v1", f"v_cmp_ne_u32 s[{sEX}:{sEX+1}], s{sT2}, v1",
                f"v_mov_b32 v{vOne}, 0x7f800000", f"s_and_b64 vcc, vcc, s[{sEX}:{sEX+1}]",
                f"v_mov_b32 v{self.vC1}, {hx(f2u(C1))}", f"v_mov_b32 v{self.vC1+1}, {hx(f2u(C1))}",
                f"v_cndmask_b32 v{vOne}, v{vOne}, 1.0, vcc",
                f"s_mov_b32 s{sC2}, {hx(f2u(C2))}", f"s_mov_b32 s{sC2+1}, {hx(f2u(C2))}",
                f"v_mov_b32 v{vOne+1}, v{vOne}"]
        inter([mf(m, i) for m in (13, 14) for i in range(4)], pre)
        a(f"""
        v_lshlrev_b32 v{vHa}, 11, v{vG}
        v_add_u32 v{vHa}, {HB}, v{vHa}
        s_lshl_b32 s{sT0}, s{sLW}, 5
        v_lshl_add_u32 v1, v{vJ}, 7, v{vHa}
        v_add_u32 v1, s{sT0}, v1
        v_mul_u32_u24 v{vHe}, 112, v{vJ}
        v_add_u32 v{vHa}, v{vHe}, v{vHa}
        v_add_u32 v{vHe}, s{sT0}, v{vHa}
        """)
        self.cyc(1)
        for i in range(4):
            self.gelu4(ACC + 4 * i, TMP + 4 * (i & 1), vOne)
            d = TMP + 8 + 4 * (i >> 1) + 2 * (i & 1)
            a(f"v_cvt_pk_bf16_f32 v{d}, v{ACC+4*i}, v{ACC+4*i+1}")
            a(f"v_cvt_pk_bf16_f32 v{d+1}, v{ACC+4*i+2}, v{ACC+4*i+3}")
            if i & 1: a(f"ds_write_b128 v1, {vr(TMP+8+4*(i>>1),4)} offset:{16*(i>>1)}")
        self.cyc(2)
        a("s_waitcnt lgkmcnt(0)")
        self.cyc(3); self.cycflush(40, 4)
        self.stamp(2)
        a("s_barrier")
        def rdH(q): return f"ds_read_b128 {vr(H+4*(q%16),4)}, v{vHa} offset:{16*q}"
        def rdE(q): return f"ds_read_b128 {vr(HE+4*(q%4),4)}, v{vHe} offset:{16*q}"
        for q in range(7): a(rdH(q))
        a(rdE(0)); a(rdE(1))
        for k in range(16):
            b = W2 + 12 * (k & 1)
            mfs = []
            for rho in range(7):
                for t in range(2):
                    d = A2 + 8 * rho + 4 * t
                    mfs.append(f"v_mfma_f32_16x16x32_bf16 {vr(d,4)}, {vr(b+4*t,4)}, {vr(H+4*((rho+k)%16),4)}, {vr(d,4) if k else 0}")
            for e in range(2):
                d = A2 + 56 + 4 * e
                mfs.append(f"v_mfma_f32_16x16x32_bf16 {vr(d,4)}, {vr(b+8,4)}, {vr(HE+4*((e+k)%4),4)}, {vr(d,4) if k else 0}")
            fill = []
            if k < 15:
                if (k + 1) % 7 == 0: fill += [f"v_add_u32 v{vW2a}, {7*9216}, v{vW2a}", f"v_add_u32 v{vW2b}, {7*9216}, v{vW2b}"]
                fill += rdW2(k + 1) + [rdH(k + 7), rdE(k + 2)]
            a("s_waitcnt lgkmcnt(0)")
            if k in (7, 11): self.stamp(21 if k == 7 else 22); a("s_barrier")
            inter(mfs[:10], fill)
            for x in mfs[10:]: a(x)
        a(f"""
        v_lshrrev_b32 v1, 3, v{vJ}
        v_mul_u32_u24 v1, {9*UNIT}, v1
        v_and_b32 v2, 7, v{vJ}
        v_lshl_add_u32 v2, v{vG}, 3, v2
        v_lshl_add_u32 v3, v2, 3, v1
        v_lshl_add_u32 v2, v2, 4, v1
        s_mul_i32 s{sA}, s{sGRP}, {MB*9}
        s_add_u32 s{sA}, s{sA}, s{sROLE}
        s_mul_i32 s{sA}, s{sA}, {UNIT}
        s_mul_i32 s{sB}, s{sLW}, {4*9*UNIT}
        s_add_u32 s{sB}, s{sB}, s{sA}
        s_add_u32 s{sC}, s{sB}, {2*9*UNIT}
        s_cmp_eq_u32 s{sLW}, 3
        s_cselect_b32 s{sC}, 0x8000000, s{sC}
        s_lshl_b32 s{sT0}, s{sLW}, 9
        s_add_u32 s{sA}, s{sA}, s{sT0}
        """)
        for rho in range(7):
            s = A2 + 8 * rho; d = TMP + 4 * (rho & 3)
            for h in range(4): a(f"v_cvt_pk_bf16_f32 v{d+h}, v{s+2*h}, v{s+2*h+1}")
            if rho: a(f"s_add_u32 s{sA}, s{sA}, {2*9*UNIT}")
            a(f"buffer_store_dwordx4 {vr(d,4)}, v2, s[{SWS}:{SWS+3}], s{sA} offen sc1")
        for e in range(2):
            s = A2 + 56 + 4 * e; d = A2 + 2 * e
            for h in range(2): a(f"v_cvt_pk_bf16_f32 v{d+h}, v{s+2*h}, v{s+2*h+1}")
            a(f"buffer_store_dwordx2 {vr(d,2)}, v3, s[{SWS}:{SWS+3}], s{sB if e == 0 else sC} offen offset:2048 sc1")
        self.stamp(3, 9)
        a("s_branch L_ccommon")
        AF = 32; BF = 96; AC = 16
        a("L_chelp:")
        a(f"s_cmp_lg_u32 s{sROLE}, 9")
        a("s_waitcnt vmcnt(0) lgkmcnt(0)")
        a("s_cbranch_scc1 L_chelp2")
        a(f"v_mul_u32_u24 v1, 288, v{vJ}\nv_lshl_add_u32 v1, v{vG}, 3, v1")
        for t in range(9): a(f"buffer_load_dwordx2 {vr(BF+2*t,2)}, v1, s[{SG}:{SG+3}], 0 offen offset:{32*t}")
        a(f"v_add_u32 v2, {LWG}, v{vTw}\nv_add_u32 v3, {LWG}, v{vT8}")
        a("s_barrier")
        self.afrags(AF, 2, 3, 0)
        a("s_waitcnt vmcnt(0) lgkmcnt(0)")
        self.smallgemm(AC, AF, BF)
        a(f"""
        v_lshlrev_b32 v1, 4, v0
        s_mul_i32 s{sA}, s{sGRP}, 9216
        s_add_u32 s{sA}, s{sA}, {GE_OFF}
        s_add_u32 s{sB}, s{sA}, 8192
        s_lshl_b32 s{sT0}, s{sLW}, 11
        s_add_u32 s{sA}, s{sA}, s{sT0}
        s_cmp_eq_u32 s{sLW}, 0
        s_cselect_b32 s{sB}, s{sB}, 0x8000000
        buffer_store_dwordx4 {vr(AC,4)}, v1, s[{SWS}:{SWS+3}], s{sA} offen sc1
        buffer_store_dwordx4 {vr(AC+4,4)}, v1, s[{SWS}:{SWS+3}], s{sA} offen offset:1024 sc1
        buffer_store_dwordx4 {vr(AC+8,4)}, v1, s[{SWS}:{SWS+3}], s{sB} offen sc1
        s_branch L_ccommon
        L_chelp2:
        s_lshl_b32 s{sT0}, s{sWAVE}, 4
        s_add_u32 s{sT0}, s{sT0}, s{sROLE}
        s_cmp_lg_u32 s{sT0}, 10
        s_cbranch_scc1 L_nozero
        v_lshrrev_b32 v1, 2, v0
        v_and_b32 v2, 3, v0
        v_lshlrev_b32 v2, 4, v2
        v_lshl_add_u32 v1, v1, 7, v2
        v_mov_b32 v4, 0
        v_mov_b32 v5, 0
        v_mov_b32 v6, 0
        v_mov_b32 v7, 0
        s_mul_i32 s{sT0}, s{sGRP}, {MB*128}
        s_add_u32 s{sT0}, s{sT0}, {FLAG_OFF}
        s_mov_b32 exec_hi, 0xffffff
        buffer_store_dwordx4 v[4:7], v1, s[{SWS}:{SWS+3}], s{sT0} offen sc1
        s_lshl_b32 s{sT0}, s{sGRP}, 2
        v_mov_b32 v2, 1
        s_mov_b64 exec, 1
        s_waitcnt vmcnt(0)
        buffer_store_dword v2, off, s[{SDBG}:{SDBG+3}], s{sT0} sc1
        s_mov_b64 exec, -1
        L_nozero:
        s_barrier
        L_ccommon:
        s_mul_i32 s{sD}, s{sGRP}, {MB*128}
        s_add_u32 s{sD}, s{sD}, {FLAG_OFF}
        s_lshl_b32 s{sT0}, s{sROLE}, 2
        v_lshl_add_u32 v7, v0, 7, s{sT0}
        v_mov_b32 v8, 1
        s_waitcnt vmcnt(0)
        """)
        self.stamp(4)
        a("s_barrier")
        a(f"""
        s_cmp_lg_u32 s{sWAVE}, 0
        s_cbranch_scc1 L_noadd
        s_cmp_gt_u32 s{sROLE}, 9
        s_cbranch_scc1 L_noadd
        s_mov_b64 exec, 0x3fff
        buffer_store_dword v8, v7, s[{SWS}:{SWS+3}], s{sD} offen sc1
        s_mov_b64 exec, -1
        L_noadd:
        """)
        self.afrags(AF, vTw, vT8, LWF)
        a(f"""
        s_lshl_b32 s{sT0}, s{sLW}, 9
        v_lshlrev_b32 v4, 3, v0
        v_add_u32 v4, s{sT0}, v4
        v_and_b32 v2, 7, v{vJ}
        v_lshl_add_u32 v2, v{vG}, 3, v2
        v_lshlrev_b32 v3, 3, v2
        v_lshlrev_b32 v2, 4, v2
        v_add_u32 v3, {FB+2048}, v3
        v_add_u32 v5, {FE}, v2
        s_lshl_b32 s{sT0}, s{sLW}, 10
        v_add_u32 v6, s{sT0}, v5
        v_add_u32 v2, {FB}, v2
        s_cmp_lg_u32 s{sWAVE}, 1
        s_cbranch_scc1 L_nopoll
        s_lshl_b32 s{sT0}, s{sROLE}, 7
        s_add_u32 s{sT0}, s{sT0}, s{sD}
        s_mov_b32 s{sT1}, 0
        v_lshlrev_b32 v7, 2, v0
        s_mov_b64 exec, 0x3ff
        L_poll:
        buffer_load_dword v1, v7, s[{SWS}:{SWS+3}], s{sT0} offen sc1
        s_add_u32 s{sT1}, s{sT1}, 1
        s_waitcnt vmcnt(0)
        v_cmp_ne_u32 vcc, 1, v1
        s_cbranch_vccz L_polld
        s_cmp_lt_u32 s{sT1}, 0x40000
        s_cbranch_scc1 L_poll
        L_polld:
        s_mov_b64 exec, -1
        L_nopoll:
        s_waitcnt lgkmcnt(0)
        """)
        self.stamp(5)
        a("s_barrier")
        self.vC1 = 220
        self.cyc(0)
        self.gather(4, BF, BF + 20)
        a("s_waitcnt lgkmcnt(0)")
        self.cyc(3); self.cycflush(50, 4)
        self.stamp(6)
        self.cyc(0)
        a("s_barrier")
        self.cyc(1)
        for c in range(4): a(f"ds_read_b128 {vr(BF+4*c,4)}, v2 offset:{512*c}")
        a(f"ds_read_b64 {vr(BF+16,2)}, v3")
        a("s_waitcnt lgkmcnt(0)")
        self.cyc(2)
        self.smallgemm(AC, AF, BF)
        self.cyc(3)
        a(f"ds_write_b128 v6, {vr(AC,4)}")
        a(f"ds_write_b128 v6, {vr(AC+4,4)} offset:512")
        a(f"ds_write_b128 v5, {vr(AC+8,4)} offset:4096")
        a("s_waitcnt lgkmcnt(0)")
        self.cycflush(44, 4); self.cyc(0); self.cycflush(48, 1)
        self.stamp(7)
        a("s_barrier")
        if self.dev: self.dump()
        a("L_end:")
        a("s_endpgm")

    def build(self):
        self.prologue(); self.loader(); self.compute()
        body = self.a.finish()
        ref = open(f"cdna_kernels/{NAME}.s.ref").read().split('\n')
        head = [l for l in ref if l.startswith(';') and '@launch' not in l]
        out = '\n'.join(head) + f"\n; @launch grid=({NWG},1,1) block=(512,1,1) lds=163840\n"
        out += f""".amdgcn_target "amdgcn-amd-amdhsa--gfx950"
.text
.globl {NAME}_kernel
.p2align 8
.type {NAME}_kernel,@function
{NAME}_kernel:
{body}.section .rodata,"a"
.p2align 6
.amdhsa_kernel {NAME}_kernel
  .amdhsa_next_free_vgpr 256
  .amdhsa_next_free_sgpr 102
  .amdhsa_accum_offset 256
  .amdhsa_group_segment_fixed_size 0
  .amdhsa_kernarg_size 80
  .amdhsa_user_sgpr_count 2
  .amdhsa_user_sgpr_kernarg_segment_ptr 1
  .amdhsa_system_sgpr_workgroup_id_x 1
.end_amdhsa_kernel
"""
        return out

if __name__ == "__main__":
    dev = "dev" in sys.argv[2:]
    open(sys.argv[1], "w").write(Gen(dev, sys.argv[2:]).build())

def check_ws(ws, fpre, ge, bf):
    import numpy as np
    p = bf(ws[:GE_OFF].view(np.uint16)).reshape(G, MB, 9, UNIT // 2)
    s = p.sum(axis=2)
    main = s[:, :, :1024].reshape(G, MB, 4, 4, 8, 2, 4)
    full = np.zeros((G, MB, 8, 144), np.float32)
    for w in range(4):
        for gg in range(4):
            for hf in range(2):
                full[:, :, :, 32*w + 16*hf + 4*gg: 32*w + 16*hf + 4*gg + 4] = main[:, :, w, gg, :, hf, :]
    ex = s[:, :, 1024:].reshape(G, MB, 4, 8, 4)
    for gg in range(4): full[:, :, :, 128 + 4*gg:132 + 4*gg] = ex[:, :, gg]
    worst = []
    for grp in range(G):
        m = 0
        for u in range(MB):
            for row in range(8):
                Fv = R*grp + (u >> 1) + 7*(8*(u & 1) + row)
                if Fv < 1000: r = fpre[0, Fv]
                elif 1008 <= Fv < 2008: r = fpre[1, Fv - 1008]
                else: continue
                d = np.abs(full[grp, u, row] - r)
                m = max(m, np.inf if np.isnan(d).any() else d.max())
        worst.append(round(float(m), 4))
    print("fpre err per group", worst, "scale", np.abs(fpre).mean())
    gw = ws[GE_OFF:GE_OFF + G*9216].view(np.float32).reshape(G, 9, 4, 16, 4)
    gr = (ge.reshape(16, 9, 4, 4) * K2).transpose(1, 2, 0, 3)
    print("ge err", np.abs(gw - gr[None]).max())
```
